```python
import torch

def _softmax(x, axis=-1):
    return torch.softmax(x, dim=axis)
def _gelu(x):
    return torch.nn.functional.gelu(x, approximate="tanh")
def _silu(x):
    return torch.nn.functional.silu(x)
def _sigmoid(x):
    return torch.sigmoid(x)
def _layernorm(x, axis=-1, eps=1e-5):
    m = x.mean(dim=axis, keepdim=True)
    v = x.var(dim=axis, keepdim=True, unbiased=False)
    return (x - m) / torch.sqrt(v + eps)
def _scatter_add(tgt, idx, src, axis=0):
    return tgt.clone().index_add_(axis, idx, src)
def _segment_sum(src, seg, n):
    out = torch.zeros((n,) + src.shape[1:], dtype=src.dtype)
    return out.index_add_(0, seg, src)
def _pad(x, pw):
    flat = tuple(v for pair in reversed(pw) for v in pair)
    return torch.nn.functional.pad(x, flat)

kernel_name = 'gated_mix__sliding_block_cached__dense_activation_gelu__decode'

def setup_inputs():

    _w = (lambda a: (lambda t: t.to(torch.bfloat16) if t.is_floating_point() else t)(torch.as_tensor(a)))
    def _A_setup():
        B, Sq, D = 1, 1, 640
        Hq, Hkv, Sk, Dh = 32, 32, 32768, 192
        assert Hq % Hkv == 0, (Hq, Hkv)
        return {
            "x": _w((lambda *s: torch.randn(*s, dtype=torch.bfloat16) * 0.05)(B, Sq, D)),
            "k_cache": _w((lambda *s: torch.randn(*s, dtype=torch.bfloat16) * 6.4)(B, Hkv, Sk, Dh)),
            "v_cache": _w((lambda *s: torch.randn(*s, dtype=torch.bfloat16) * 0.2)(B, Hkv, Sk, Dh)),
            "wq": _w((lambda *s: torch.randn(*s, dtype=torch.bfloat16) * 6.4)(D, Hq * Dh) * (D ** -0.5)),
            "wo": _w((lambda *s: torch.randn(*s, dtype=torch.bfloat16) * 0.2)(Hq * Dh, D) * ((Hq * Dh) ** -0.5)),
        }
    _A_in = _A_setup()

    def _B_setup():
        B, S, D, F = 1, 1, 640, 1536
        return {
            "x": _w((lambda *s: torch.randn(*s, dtype=torch.bfloat16) * 0.05)(B, S, D)),
            "w1": _w((lambda *s: torch.randn(*s, dtype=torch.bfloat16) * 3.2)(D, F) * (D ** -0.5)),
            "b1": _w((lambda *s: torch.randn(*s, dtype=torch.bfloat16) * 3.2)(F) * 0.01),
            "w2": _w((lambda *s: torch.randn(*s, dtype=torch.bfloat16) * 0.05)(F, D) * (F ** -0.5)),
            "b2": _w((lambda *s: torch.randn(*s, dtype=torch.bfloat16) * 0.05)(D) * 0.01),
        }
    _B_in = _B_setup()

    return {
        "A_x": _A_in["x"],
        "A_k_cache": _A_in["k_cache"],
        "A_v_cache": _A_in["v_cache"],
        "A_wq": _A_in["wq"],
        "A_wo": _A_in["wo"],
        "B_x": _B_in["x"],
        "B_w1": _B_in["w1"],
        "B_b1": _B_in["b1"],
        "B_w2": _B_in["w2"],
        "B_b2": _B_in["b2"],
        "gate_w": _w((lambda *s: torch.randn(*s, dtype=torch.bfloat16) * 0.05)(640) * 16.0),
    }

def reference(A_x, A_k_cache, A_v_cache, A_wq, A_wo, B_x, B_w1, B_b1, B_w2, B_b2, gate_w):
    def _A_ref(x, k_cache, v_cache, wq, wo):
        B, Sq, D = x.shape
        Hq, Dh = 32, 192
        Hkv, Sk = k_cache.shape[1], k_cache.shape[2]
        W = min(4096, max(256, Sk // 4))
        rep = Hq // Hkv
        q = (lambda x, *d: x.permute(*d))((x @ wq).reshape(B, Sq, Hq, Dh), 0, 2, 1, 3)
        k = (lambda x, n, axis: torch.repeat_interleave(x, n, dim=axis))(k_cache[:, :, Sk - W:, :], rep, axis=1)
        v = (lambda x, n, axis: torch.repeat_interleave(x, n, dim=axis))(v_cache[:, :, Sk - W:, :], rep, axis=1)
        scores = torch.einsum("bhqd,bhkd->bhqk", q, k) * (Dh ** -0.5)
        p = _softmax(scores, axis=-1)
        o = torch.einsum("bhqk,bhkd->bhqd", p, v)
        return (lambda x, *d: x.permute(*d))(o, 0, 2, 1, 3).reshape(B, Sq, Hq * Dh) @ wo

    def _B_ref(x, w1, b1, w2, b2):
        h = torch.einsum("bsd,df->bsf", x, w1) + b1
        h = _gelu(h)
        return torch.einsum("bsf,fd->bsd", h, w2) + b2

    x = A_x
    g = _sigmoid((x * gate_w).sum(-1, keepdims=True))
    a = _A_ref(x, A_k_cache, A_v_cache, A_wq, A_wo)
    b = _B_ref(x, B_w1, B_b1, B_w2, B_b2)
    return g * a + (1 - g) * b
```

```python
import re, struct

def f32hex(x):
    return "0x%08x" % struct.unpack("<I", struct.pack("<f", x))[0]

TRANS = ("v_exp_f32","v_log_f32","v_rcp_f32","v_rsq_f32","v_sqrt_f32","v_sin_f32","v_cos_f32")

def regs_of(op):
    op = op.strip()
    op = op.lstrip("-")
    m = re.fullmatch(r"abs\((.*)\)", op) or re.fullmatch(r"\|(.*)\|", op)
    if m: op = m.group(1)
    m = re.fullmatch(r"([vsa])\[(\d+):(\d+)\]", op)
    if m: return {(m.group(1), i) for i in range(int(m.group(2)), int(m.group(3))+1)}
    m = re.fullmatch(r"([vsa])(\d+)", op)
    if m: return {(m.group(1), int(m.group(2)))}
    if op in ("vcc","vcc_lo","vcc_hi"): return {("vcc",0)}
    if op in ("exec","exec_lo","exec_hi"): return {("exec",0)}
    if op == "m0": return {("m0",0)}
    return set()

class Ins:
    def __init__(self, text):
        self.text = text
        t = text.split(";")[0].strip()
        parts = t.split(None, 1)
        self.mn = parts[0]
        rest = parts[1] if len(parts) > 1 else ""
        ops = [x.strip() for x in re.split(r",(?![^\[]*\])", rest)] if rest else []
        self.mods = ""
        if ops:
            l = ops[-1].split(None, 1)
            if len(l) > 1:
                ops[-1] = l[0]; self.mods = l[1]
        self.ops = ops
        mn = self.mn
        self.is_mfma = mn.startswith("v_mfma")
        self.is_valu = mn.startswith("v_") and not self.is_mfma
        self.is_trans = any(mn.startswith(x) for x in TRANS)
        self.is_dot = mn.startswith("v_dot")
        self.is_dpp = "_dpp" in mn or "quad_perm" in text or "row_" in self.mods
        self.is_perml = mn.startswith("v_permlane")
        self.is_rdlane = mn.startswith("v_readlane") or mn.startswith("v_readfirstlane")
        self.is_vmem = mn.startswith("buffer_") or mn.startswith("global_")
        self.is_ds = mn.startswith("ds_")
        self.is_salu = mn.startswith("s_")
        self.w = set(); self.r = set(); self.cread = set(); self.storedata = set()
        R = [regs_of(o) for o in ops]
        if self.is_mfma:
            self.w = R[0]; self.r = R[1] | R[2] | R[3]; self.ab = R[1] | R[2]; self.cread = R[3]
        elif self.is_valu:
            if self.is_perml:
                self.w = R[0] | R[1]; self.r = R[0] | R[1]
            elif mn.startswith("v_cmp"):
                self.w = R[0]; self.r = set().union(*R[1:])
            elif mn.startswith("v_add_co") or mn.startswith("v_addc_co") or mn.startswith("v_sub_co"):
                self.w = R[0] | R[1]; self.r = set().union(*R[2:])
            else:
                self.w = R[0]; self.r = set().union(*R[1:]) if len(R) > 1 else set()
                if mn.startswith("v_fmac") or mn.startswith("v_dot2c") or mn.startswith("v_writelane") or self.is_dpp:
                    self.r |= R[0]
                if mn.startswith("v_dot2c"): self.cread = R[0]
                elif self.is_dot: self.cread = R[3]
        elif self.is_vmem:
            if "load" in mn and " lds" not in (" " + self.mods):
                self.w = R[0]; self.r = set().union(*R[1:])
            elif "load" in mn:
                self.r = set().union(*R)
            elif mn.startswith("buffer_"):
                self.r = set().union(*R); self.storedata = R[0]
                if "sc0" in self.mods and "atomic" in mn: self.w = R[0]
            else:
                self.r = set().union(*R); self.storedata = R[1] if "atomic" not in mn or len(R) == 3 else R[2]
            if not ("x3" in mn or "x4" in mn): self.storedata = set()
        elif self.is_ds:
            if mn.startswith("ds_read") or "rtn" in mn or "permute" in mn or "swizzle" in mn:
                self.w = R[0]; self.r = set().union(*R[1:])
            else:
                self.r = set().union(*R)
        elif self.is_salu:
            if ops and not mn.startswith(("s_cmp","s_cbranch","s_branch","s_waitcnt","s_nop","s_sleep","s_setprio","s_barrier","s_endpgm","s_bitcmp")):
                self.w = R[0]; self.r = set().union(*R[1:]) if len(R) > 1 else set()
                if "saveexec" in mn: self.w |= {("exec",0)}
            else:
                self.r = set().union(*R) if R else set()
        self.states = 1
        if mn == "s_nop": self.states = int(ops[0], 0) + 1

def vg(s): return {x for x in s if x[0] in ("v", "a")}
def sg(s): return {x for x in s if x[0] in ("s", "vcc")}

def need(p, c):
    n = 0
    if p.is_valu:
        pw = vg(p.w)
        if c.is_valu and c.is_dpp and pw & c.r: n = max(n, 2)
        if c.is_perml and pw & c.r: n = max(n, 2)
        if p.is_trans and (c.is_valu or c.is_vmem or c.is_ds) and pw & c.r: n = max(n, 1)
        if c.is_mfma and pw & c.r: n = max(n, 2)
        if c.is_rdlane and pw & c.r: n = max(n, 1)
        if p.is_dot:
            if c.mn == p.mn:
                if pw & (c.r - c.cread): n = max(n, 3)
            elif pw & (c.r | c.w): n = max(n, 3)
        if "sdwa" in p.mn or "op_sel" in p.mods:
            if c.is_valu and pw & (c.r | c.w): n = max(n, 1)
        ps = sg(p.w)
        if ps:
            if c.is_valu and ps & c.r: n = max(n, 4 if c.is_rdlane else 2)
            if c.is_valu and ("cndmask" in c.mn or "addc" in c.mn) and ("vcc",0) in ps: n = max(n, 2)
            if c.is_vmem and ps & c.r: n = max(n, 5)
            if c.is_salu and ps & c.r: n = max(n, 1)
    if p.is_mfma:
        big = "32x32" in p.mn
        if c.is_mfma:
            if p.w & c.ab: n = max(n, 12 if big else 8)
            if p.w & c.cread and p.w != c.cread: n = max(n, 10 if big else 6)
        elif (c.is_valu or c.is_vmem or c.is_ds):
            if p.w & (c.r | c.w): n = max(n, 12 if big else 8)
            if c.is_valu and p.cread & c.w: n = max(n, 7 if big else 3)
    if p.is_vmem and p.storedata:
        if p.storedata & c.w: n = max(n, 2)
    if p.is_salu and ("m0",0) in p.w and c.is_vmem and " lds" in (" " + c.mods): n = max(n, 1)
    return n

class Asm:
    def __init__(self):
        self.lines = []
        self.hist = []
    def raw(self, s):
        self.lines.append(s)
    def label(self, name):
        self.lines.append(name + ":")
    def fence(self):
        self.hist = []
    def __call__(self, text):
        for l in text.split("\n"):
            l = l.strip()
            if not l: continue
            if l.startswith(";"):
                self.lines.append("    " + l); continue
            if l.endswith(":") or l.startswith("."):
                self.lines.append(l); continue
            c = Ins(l)
            dist = 0; req = 0
            for p in reversed(self.hist):
                k = need(p, c) - dist
                if k > req: req = k
                dist += p.states
                if dist > 20: break
            if req > 0:
                nop = Ins("s_nop %d" % (req - 1))
                self.lines.append("    s_nop %d" % (req - 1))
                self.hist.append(nop)
            self.lines.append("    " + l)
            self.hist.append(c)
            if len(self.hist) > 40: self.hist = self.hist[-30:]
    def text(self):
        return "\n".join(self.lines) + "\n"
```

```python
import sys, math
from asmlib import Asm, f32hex
NAME="gated_mix__sliding_block_cached__dense_activation_gelu__decode_kernel"
HS=12582912
HEADER=open("gated_mix__sliding_block_cached__dense_activation_gelu__decode.s.ref").read().split("; Override launch")[0] if False else None

QP=0x1000; HP=0x40000; ML=0x80000; H1=0x90000; YB=0x100000; WS_USED=0x200000
LQ=0; LWM=512; LHV=640; LG=704; LO=1024; LDS_SIZE=2048
SPIN=400000

def gen(diag=False, ymajor="prod", kpre=3, vla=4, prio=True):
    a=Asm()
    ts_used=[0,1]
    def stamp(i):
        if diag: a(f"s_memrealtime s[{76+2*i}:{77+2*i}]")
    a.raw(f"; @launch grid=(256,1,1) block=(512,1,1) lds={LDS_SIZE}")
    a.raw('.amdgcn_target "amdgcn-amd-amdhsa--gfx950"\n.text')
    a.raw(f".globl {NAME}\n.p2align 8\n.type {NAME},@function\n{NAME}:")
    a("s_cmp_ge_u32 s2, 256\ns_cbranch_scc1 L_end")
    a("s_load_dwordx16 s[36:51], s[0:1], 0")
    a("s_load_dwordx8 s[52:59], s[0:1], 64")
    a("s_load_dwordx4 s[60:63], s[0:1], 96")
    stamp(0)
    if diag:
        for i in range(1,12): a(f"s_mov_b64 s[{76+2*i}:{77+2*i}], 0")
    sW="s3"; sH="s64"; sS="s65"; sTag="s66"
    a(f"v_lshrrev_b32 v2, 6, v0\nv_and_b32 v1, 63, v0\nv_readfirstlane_b32 {sW}, v2")
    a(f"s_and_b32 {sH}, s2, 31\ns_lshr_b32 {sS}, s2, 5")
    a("v_lshrrev_b32 v2, 3, v1\nv_and_b32 v3, 7, v1\nv_mul_u32_u24 v4, 384, v2\nv_lshl_add_u32 v4, v3, 4, v4")
    a(f"s_and_b32 s68, {sW}, 3\ns_lshl_b32 s68, s68, 3\ns_lshr_b32 s69, {sW}, 2\ns_lshl_b32 s69, s69, 8\ns_add_u32 s68, s68, s69\ns_add_u32 s68, s68, {sS}\ns_mul_i32 s68, s68, 3072")
    a(f"s_mul_i32 s67, {sH}, {HS}\ns_add_u32 s67, s67, s68\ns_add_u32 s67, s67, {28672*384}")
    a(f"s_mov_b32 s6, {7*98304+3072}\ns_mov_b32 s7, 0x20000\ns_mov_b32 s10, {7*98304+3072}\ns_mov_b32 s11, 0x20000")
    a("s_waitcnt lgkmcnt(0)")
    a("s_load_dword s70, s[62:63], 0   ; epoch")
    a("s_add_u32 s4, s38, s67\ns_addc_u32 s5, s39, 0\ns_and_b32 s5, s5, 0xffff")
    a("s_add_u32 s8, s40, s67\ns_addc_u32 s9, s41, 0\ns_and_b32 s9, s9, 0xffff")
    a(f"s_mov_b32 s20, s62\ns_and_b32 s21, s63, 0xffff\ns_mov_b32 s22, {WS_USED}\ns_mov_b32 s23, 0x20000")
    a(f"s_mov_b32 s32, s36\ns_and_b32 s33, s37, 0xffff\ns_mov_b32 s34, 1280\ns_mov_b32 s35, 0x20000")
    K0=64; V0=160
    def kreg(t,j): return K0+12*t+4*j
    def vreg(t,j): return V0+12*t+4*j
    def ld_kv(srd,base,t):
        a(f"s_mov_b32 s71, {t*98304}")
        for j in range(3):
            r=base+12*t+4*j
            a(f"buffer_load_dwordx4 v[{r}:{r+3}], v4, s[{srd}:{srd+3}], s71 offen offset:{128*j} nt")
    def masks():
        a("v_and_b32 v5, 1, v1\nv_lshlrev_b32 v5, 4, v5\nv_mov_b32 v6, 0xffff\nv_lshlrev_b32 v6, v5, v6\nv_lshrrev_b32 v5, 1, v3")
        for w in range(4):
            a(f"v_cmp_eq_u32 vcc, {w}, v5\nv_cndmask_b32 v{16+w}, 0, v6, vcc")
        a("v_mov_b32 v15, 0xff")
    def tagcalc():
        a("s_waitcnt lgkmcnt(0)")
        a(f"s_and_b32 s72, s70, 0x7f7f7f7f\ns_add_u32 s72, s72, 0x01010101\ns_and_b32 s73, s70, 0x80808080\ns_xor_b32 {sTag}, s72, s73")
        a(f"s_lshr_b32 s73, {sTag}, 8\ns_lshr_b32 s74, {sTag}, 16\ns_lshr_b32 s75, {sTag}, 24\ns_mov_b32 s72, {sTag}")
    def tag4(r):
        for k in range(4): a(f"v_bfi_b32 v{r+k}, v15, s{72+k}, v{r+k}")
    def chk4(r,t0,first,accreg):
        a(f"v_perm_b32 v{t0}, v{r+1}, v{r}, s30\nv_perm_b32 v{t0+1}, v{r+3}, v{r+2}, s31")
        a(f"v_or_b32 v{t0}, v{t0}, v{t0+1}")
        if first: a(f"v_xor_b32 v{accreg}, {sTag}, v{t0}")
        else: a(f"v_xor_b32 v{t0}, {sTag}, v{t0}\nv_or_b32 v{accreg}, v{accreg}, v{t0}")
    def red8(op,r):
        for mod in ("quad_perm:[1,0,3,2]","quad_perm:[2,3,0,1]","row_half_mirror"):
            for x in r: a(f"{op}_dpp v{x}, v{x}, v{x} {mod} row_mask:0xf bank_mask:0xf")
    def red16(op,r):
        red8(op,r)
        for x in r: a(f"{op}_dpp v{x}, v{x}, v{x} row_mirror row_mask:0xf bank_mask:0xf")
    def redrows(op,x,t):
        a(f"v_mov_b32 v{t}, v{x}\nv_permlane16_swap_b32 v{x}, v{t}\n{op} v{x}, v{x}, v{t}")
        a(f"v_mov_b32 v{t}, v{x}\nv_permlane32_swap_b32 v{x}, v{t}\n{op} v{x}, v{x}, v{t}")

    a("s_mov_b32 s30, 0x0c0c0400\ns_mov_b32 s31, 0x04000c0c")
    a(f"s_cmp_ge_u32 {sW}, 4\ns_cbranch_scc1 L_young")
    if prio: a("s_setprio 2")
    a(f"s_cmp_eq_u32 {sW}, 3\ns_cbranch_scc1 L_gate")
    S1=V0
    a(f"s_mul_i32 s68, {sS}, {80*12288}\ns_mul_i32 s69, {sH}, 384\ns_add_u32 s68, s68, s69\ns_lshl_b32 s69, {sW}, 7\ns_add_u32 s68, s68, s69")
    a(f"s_add_u32 s12, s42, s68\ns_addc_u32 s13, s43, 0\ns_and_b32 s13, s13, 0xffff\ns_mov_b32 s14, {79*12288+128}\ns_mov_b32 s15, 0x20000")
    a(f"s_mul_i32 s68, {sH}, {20*3072}\ns_add_u32 s68, s68, s69\ns_mul_i32 s69, {sS}, 384\ns_add_u32 s68, s68, s69")
    a(f"s_add_u32 s16, s48, s68\ns_addc_u32 s17, s49, 0\ns_and_b32 s17, s17, 0xffff\ns_mov_b32 s18, {19*3072+128}\ns_mov_b32 s19, 0x20000")
    a(f"v_mul_u32_u24 v5, {10*12288}, v2\nv_lshl_add_u32 v5, v3, 4, v5")
    a(f"v_mul_u32_u24 v6, {3*3072}, v2\nv_lshl_add_u32 v6, v3, 4, v6")
    a(f"v_mul_u32_u24 v7, 20, v2\ns_mul_i32 s68, {sS}, 160")
    a(f"v_mul_u32_u24 v8, 6, v2\ns_mul_i32 s69, {sH}, 40")
    a(f"buffer_load_dwordx4 v[{S1+52}:{S1+55}], v7, s[32:35], s68 offen")
    a(f"buffer_load_dword v{S1+56}, v7, s[32:35], s68 offen offset:16")
    for t in range(3): a(f"buffer_load_ushort v{S1+60+t}, v8, s[32:35], s69 offen offset:{2*t}")
    for t in range(10):
        a(f"s_mov_b32 s71, {t*12288}\nbuffer_load_dwordx4 v[{S1+4*t}:{S1+4*t+3}], v5, s[12:15], s71 offen nt")
    for t in range(3):
        a(f"s_mov_b32 s71, {t*3072}\nbuffer_load_dwordx4 v[{S1+40+4*t}:{S1+43+4*t}], v6, s[16:19], s71 offen nt")
    for t in range(kpre): ld_kv(4,K0,t)
    masks()
    a(f"s_lshl_b32 s68, {sH}, 3\ns_add_u32 s68, s68, {sS}\ns_mul_i32 s68, s68, 768\ns_add_u32 s68, s68, {QP}")
    a(f"s_mul_i32 s69, s2, 768\ns_add_u32 s69, s69, {HP}")
    a(f"v_mov_b32 v9, s68\nv_mov_b32 v10, s69\nv_cmp_gt_u32 vcc, 32, v1\nv_cndmask_b32 v9, v10, v9, vcc")
    a(f"v_and_b32 v10, 16, v1\nv_lshl_add_u32 v10, v3, 5, v10\nv_add_u32 v9, v9, v10\ns_lshl_b32 s68, {sW}, 8\nv_add_u32 v9, s68, v9")
    a(f"v_lshrrev_b32 v10, 4, v1\nv_mul_u32_u24 v11, 768, v10\nv_and_b32 v12, 15, v1\nv_lshl_add_u32 v11, v12, 4, v11")
    a(f"s_mul_i32 s69, {sH}, {8*768}\ns_add_u32 s69, s69, s68\ns_add_u32 s69, s69, {QP}\nv_add_u32 v11, s69, v11")
    a(f"v_and_b32 v13, 1, v10\nv_lshlrev_b32 v13, 1, v13\nv_lshrrev_b32 v14, 1, v10\nv_add_u32 v13, v13, v14\nv_lshl_add_u32 v13, v12, 2, v13\nv_lshlrev_b32 v13, 1, v13\ns_lshl_b32 s69, {sW}, 7\nv_add_u32 v13, s69, v13")
    tagcalc()
    a("s_mov_b32 s68, 0x01000100\ns_mov_b32 s69, 0x03020302")
    a(f"s_waitcnt vmcnt({13+3*kpre})")
    for t in range(13):
        A=52+4*(t&1)
        if t<10: a(f"v_perm_b32 v60, v{S1+52+t//2}, v{S1+52+t//2}, s{68+(t&1)}")
        else: a(f"v_perm_b32 v60, v{S1+60+t-10}, v{S1+60+t-10}, s68")
        for w in range(4): a(f"v_and_b32 v{A+w}, v60, v{16+w}")
        a(f"s_waitcnt vmcnt({12-t+3*kpre})")
        D=32 if t<10 else 36
        C="0" if t in (0,10) else f"v[{D}:{D+3}]"
        a(f"v_mfma_f32_16x16x32_bf16 v[{D}:{D+3}], v[{A}:{A+3}], v[{S1+4*t}:{S1+4*t+3}], {C}")
    for r in range(4): a(f"v_permlane32_swap_b32 v{32+r}, v{36+r}")
    for r in range(4): a(f"v_add_f32_dpp v{32+r}, v{36+r}, v{32+r} row_ror:8 row_mask:0xf bank_mask:0xf")
    tag4(32)
    a("s_mov_b32 exec_lo, 0x00ff00ff\ns_mov_b32 exec_hi, 0x00ff00ff")
    a("buffer_store_dwordx4 v[32:35], v9, s[20:23], 0 offen sc1")
    a("s_mov_b64 exec, -1")
    stamp(2)
    for t in range(kpre,8): ld_kv(4,K0,t)
    for t in range(4): ld_kv(8,V0,t)
    a("buffer_load_dwordx4 v[52:55], v11, s[20:23], 0 offen sc1")
    a("buffer_load_dwordx4 v[56:59], v11, s[20:23], 0 offen offset:3072 sc1")
    for t in range(4,8): ld_kv(8,V0,t)
    a(f"s_mov_b32 s68, 0")
    a("s_waitcnt vmcnt(12)")
    a("L_qpoll:")
    chk4(52,60,True,62); chk4(56,60,False,62)
    a("v_cmp_ne_u32 vcc, 0, v62\ns_cbranch_vccz L_qok")
    a(f"s_add_u32 s68, s68, 1\ns_cmp_gt_u32 s68, {SPIN}\ns_cbranch_scc1 L_qok")
    a("buffer_load_dwordx4 v[52:55], v11, s[20:23], 0 offen sc1")
    a("buffer_load_dwordx4 v[56:59], v11, s[20:23], 0 offen offset:3072 sc1")
    a("s_waitcnt vmcnt(0)\ns_branch L_qpoll")
    a("L_qok:")
    if diag: a(f"s_mov_b32 s{76+2*10}, s68")
    for r in range(4): a(f"v_add_f32 v{52+r}, v{52+r}, v{56+r}")
    a("v_permlane32_swap_b32 v52, v53\nv_permlane32_swap_b32 v54, v55\nv_add_f32 v52, v52, v53\nv_add_f32 v54, v54, v55")
    a("v_permlane16_swap_b32 v52, v54\nv_add_f32 v52, v52, v54\nv_cvt_pk_bf16_f32 v52, v52, v52")
    a(f"ds_write_b16 v13, v52 offset:{LQ}")
    stamp(3)
    a("s_branch L_b1")
    a.fence()
    a("L_gate:")
    G=V0
    a("v_mul_u32_u24 v7, 20, v1")
    a(f"buffer_load_dwordx4 v[{G}:{G+3}], v7, s[32:35], 0 offen\nbuffer_load_dword v{G+4}, v7, s[32:35], 0 offen offset:16")
    a(f"global_load_dwordx4 v[{G+8}:{G+11}], v7, s[56:57]\nglobal_load_dword v{G+12}, v7, s[56:57] offset:16")
    a(f"s_mul_i32 s68, {sH}, 3\ns_lshr_b32 s68, s68, 1\ns_mul_i32 s69, {sS}, 48\ns_add_u32 s69, s69, s68\ns_lshl_b32 s69, s69, 3")
    a("v_lshrrev_b32 v10, 5, v1\nv_bfe_u32 v12, v1, 4, 1\nv_lshl_add_u32 v13, v10, 2, v12")
    a("v_lshl_add_u32 v14, v13, 1, s69")
    a(f"global_load_ushort v62, v14, s[50:51]\nglobal_load_ushort v63, v14, s[50:51] offset:4")
    for t in range(kpre): ld_kv(4,K0,t)
    masks()
    a(f"v_mov_b32 v52, 0\nv_mov_b32 v53, 0\nv_mov_b32 v54, 0\nv_mov_b32 v55, 0\nv_lshlrev_b32 v9, 4, v1\nds_write_b128 v9, v[52:55] offset:{LO}")
    a(f"v_and_b32 v11, 31, v1\nv_mul_u32_u24 v11, 768, v11\nv_lshl_add_u32 v11, v10, 4, v11")
    a(f"s_lshl_b32 s68, s68, 4\ns_mul_i32 s69, {sS}, {32*768}\ns_add_u32 s68, s68, s69\ns_add_u32 s68, s68, {HP}\nv_add_u32 v11, s68, v11")
    a(f"v_lshlrev_b32 v13, 2, v13")
    tagcalc()
    a(f"s_waitcnt vmcnt({2+3*kpre})")
    a("v_mov_b32 v52, 0")
    for k in range(5):
        a(f"v_lshlrev_b32 v53, 16, v{G+k}\nv_and_b32 v54, 0xffff0000, v{G+k}\nv_lshlrev_b32 v55, 16, v{G+8+k}\nv_and_b32 v56, 0xffff0000, v{G+8+k}")
        a("v_mul_f32 v53, v53, v55\nv_mul_f32 v54, v54, v56\nv_cvt_pk_bf16_f32 v53, v53, v54\nv_lshlrev_b32 v54, 16, v53\nv_and_b32 v53, 0xffff0000, v53\nv_add_f32 v52, v52, v54\nv_add_f32 v52, v52, v53")
    red16("v_add_f32",[52]); redrows("v_add_f32",52,53)
    a("v_cvt_pk_bf16_f32 v52, v52, v52\nv_and_b32 v52, 0xffff0000, v52")
    a(f"v_mul_f32 v52, {f32hex(-math.log2(math.e))}, v52\nv_exp_f32 v52, v52\nv_add_f32 v52, 1.0, v52\nv_rcp_f32 v52, v52")
    a("v_cvt_pk_bf16_f32 v52, v52, v52\nv_and_b32 v52, 0xffff0000, v52\nv_sub_f32 v53, 1.0, v52\nv_cvt_pk_bf16_f32 v53, v53, v53\nv_and_b32 v53, 0xffff0000, v53")
    a(f"v_mov_b32 v9, 0\nds_write_b64 v9, v[52:53] offset:{LG}")
    stamp(2)
    for t in range(kpre,8): ld_kv(4,K0,t)
    for t in range(4): ld_kv(8,V0,t)
    a("buffer_load_dwordx4 v[52:55], v11, s[20:23], 0 offen sc1")
    for t in range(4,8): ld_kv(8,V0,t)
    a(f"s_mov_b32 s68, 0")
    a("s_waitcnt vmcnt(12)")
    a("L_hpoll:")
    chk4(52,60,True,56)
    a("v_cmp_ne_u32 vcc, 0, v56\ns_cbranch_vccz L_hok")
    a(f"s_add_u32 s68, s68, 1\ns_cmp_gt_u32 s68, {SPIN}\ns_cbranch_scc1 L_hok")
    a("buffer_load_dwordx4 v[52:55], v11, s[20:23], 0 offen sc1")
    a("s_waitcnt vmcnt(0)\ns_branch L_hpoll")
    a("L_hok:")
    if diag: a(f"s_mov_b32 s{76+2*10}, s68")
    a("v_permlane16_swap_b32 v52, v53\nv_permlane16_swap_b32 v54, v55\nv_add_f32 v52, v52, v53\nv_add_f32 v54, v54, v55")
    red16("v_add_f32",[52,54])
    a("v_cvt_pk_bf16_f32 v53, v52, v54\nv_lshlrev_b32 v52, 16, v53\nv_and_b32 v54, 0xffff0000, v53")
    a("v_lshlrev_b32 v62, 16, v62\nv_lshlrev_b32 v63, 16, v63\nv_add_f32 v52, v52, v62\nv_add_f32 v54, v54, v63")
    a("v_cvt_pk_bf16_f32 v53, v52, v54\nv_lshlrev_b32 v52, 16, v53\nv_and_b32 v54, 0xffff0000, v53")
    c1=-2*math.sqrt(2/math.pi)*math.log2(math.e)
    for x,t in ((52,56),(54,57)):
        a(f"v_mul_f32 v{t}, v{x}, v{x}\nv_mul_f32 v{t}, {f32hex(0.044715)}, v{t}\nv_fma_f32 v{t}, v{t}, v{x}, v{x}\nv_mul_f32 v{t}, {f32hex(c1)}, v{t}")
        a(f"v_exp_f32 v{t}, v{t}\nv_add_f32 v{t}, 1.0, v{t}\nv_rcp_f32 v{t}, v{t}\nv_mul_f32 v{x}, v{x}, v{t}\nv_cvt_pk_bf16_f32 v{x}, v{x}, v{x}")
    a(f"ds_write_b32 v13, v52 offset:{LHV}\nds_write_b32 v13, v54 offset:{LHV+8}")
    stamp(3)
    a("s_branch L_b1")
    a.fence()
    a("L_young:")
    for t in range(8): ld_kv(4,K0,t)
    masks()
    tagcalc()
    for t in range(vla): ld_kv(8,V0,t)
    stamp(3)
    a("L_b1:")
    a.fence()
    a("s_waitcnt lgkmcnt(0)\ns_barrier")
    stamp(4)
    a("v_lshlrev_b32 v5, 4, v3")
    for j in range(3): a(f"ds_read_b128 v[{20+4*j}:{23+4*j}], v5 offset:{LQ+128*j}")
    for t in range(8): a(f"v_mov_b32 v{44+t}, 0")
    a(f"s_waitcnt vmcnt({3*vla}) lgkmcnt(0)")
    for j in range(3):
        for w in range(4):
            for t in range(8): a(f"v_dot2c_f32_bf16 v{44+t}, v{kreg(t,j)+w}, v{20+4*j+w}")
    red8("v_add_f32",list(range(44,52)))
    sc=f32hex(192**-0.5)
    for t in range(0,8,2):
        x,y=44+t,45+t
        a(f"v_cvt_pk_bf16_f32 v52, v{x}, v{y}\nv_lshlrev_b32 v{x}, 16, v52\nv_and_b32 v{y}, 0xffff0000, v52\nv_mul_f32 v{x}, {sc}, v{x}\nv_mul_f32 v{y}, {sc}, v{y}")
        a(f"v_cvt_pk_bf16_f32 v52, v{x}, v{y}\nv_lshlrev_b32 v{x}, 16, v52\nv_and_b32 v{y}, 0xffff0000, v52")
    a("v_max3_f32 v52, v44, v45, v46\nv_max3_f32 v53, v47, v48, v49\nv_max3_f32 v52, v52, v50, v51\nv_max_f32 v52, v52, v53")
    a("v_max_f32_dpp v52, v52, v52 row_ror:8 row_mask:0xf bank_mask:0xf")
    redrows("v_max_f32",52,53)
    a(f"s_mov_b32 s68, {f32hex(math.log2(math.e))}\nv_mul_f32 v52, s68, v52")
    for t in range(8): a(f"v_fma_f32 v{44+t}, v{44+t}, s68, -v52")
    for t in range(8): a(f"v_exp_f32 v{44+t}, v{44+t}")
    a("v_add_f32 v53, v44, v45\nv_add_f32 v54, v46, v47\nv_add_f32 v55, v48, v49\nv_add_f32 v56, v50, v51\nv_add_f32 v53, v53, v54\nv_add_f32 v55, v55, v56\nv_add_f32 v53, v53, v55")
    a("v_add_f32_dpp v53, v53, v53 row_ror:8 row_mask:0xf bank_mask:0xf")
    redrows("v_add_f32",53,54)
    a(f"s_lshl_b32 s68, {sW}, 3\nv_mov_b32 v5, s68\nds_write_b64 v5, v[52:53] offset:{LWM}")
    a("s_waitcnt lgkmcnt(0)\ns_barrier")
    stamp(5)
    a(f"s_cmp_ge_u32 {sW}, 4\ns_cbranch_scc0 L_nov")
    for t in range(vla,8): ld_kv(8,V0,t)
    a("s_barrier     ; B2b (young)")
    a("L_nov:")
    a(f"v_lshlrev_b32 v5, 3, v3\nds_read_b64 v[54:55], v5 offset:{LWM}\ns_waitcnt lgkmcnt(0)")
    a("v_mov_b32 v56, v54")
    red8("v_max_f32",[56])
    a("v_sub_f32 v52, v52, v56\nv_exp_f32 v52, v52")
    a("v_sub_f32 v54, v54, v56\nv_exp_f32 v54, v54\nv_mul_f32 v57, v54, v55")
    red8("v_add_f32",[57])
    a(f"s_cmp_eq_u32 {sW}, 3\ns_cbranch_scc0 L_noml")
    a(f"s_lshl_b32 s68, {sH}, 3\ns_add_u32 s68, s68, {sS}\ns_lshl_b32 s68, s68, 7\ns_add_u32 s68, s68, {ML}")
    a(f"v_mov_b32 v5, s68\nv_mov_b32 v59, {sTag}\ns_mov_b64 exec, 1\nbuffer_store_dwordx4 v[56:59], v5, s[20:23], 0 offen sc1\ns_mov_b64 exec, -1")
    a("L_noml:")
    for t in range(8):
        a(f"v_mul_f32 v{44+t}, v52, v{44+t}\nv_cvt_pk_bf16_f32 v{44+t}, v{44+t}, v{44+t}")
        for w in range(4): a(f"v_and_b32 v{K0+4*t+w}, v{44+t}, v{16+w}")
    a("v_lshrrev_b32 v5, 1, v1\nv_and_b32 v5, 8, v5\nv_add_u32 v5, v5, v3\nv_lshlrev_b32 v5, 2, v5")
    for k in range(3):
        d=f"v{10}"
        a(f"v_mul_u32_u24 v10, 3, v1\nv_add_u32 v10, {k}, v10")
        a(f"v_and_b32 v11, 0xc0, v10\nv_and_b32 v12, 3, v10\nv_lshl_add_u32 v11, v12, 4, v11\nv_bfe_u32 v12, v10, 3, 3\nv_add_u32 v11, v11, v12\nv_and_b32 v12, 4, v10\nv_lshl_add_u32 v11, v12, 1, v11\nv_lshlrev_b32 v{6+k}, 2, v11")
    a(f"s_lshl_b32 s68, {sH}, 6\ns_add_u32 s68, s68, {sS}\ns_lshl_b32 s68, s68, 7\ns_add_u32 s68, s68, {H1}")
    a(f"v_lshlrev_b32 v9, 10, v2\nv_lshl_add_u32 v9, v3, 4, v9\nv_add_u32 v9, s68, v9\nv_mov_b32 v63, {sTag}")
    for t in range(8):
        a(f"s_waitcnt vmcnt({3*(7-t)})")
        for j in range(3):
            C="0" if t==0 else f"v[{32+4*j}:{35+4*j}]"
            a(f"v_mfma_f32_16x16x32_bf16 v[{32+4*j}:{35+4*j}], v[{K0+4*t}:{K0+4*t+3}], v[{vreg(t,j)}:{vreg(t,j)+3}], {C}")
    stamp(6)
    a("s_mov_b32 exec_lo, 0x00ff00ff\ns_mov_b32 exec_hi, 0xff00ff00")
    for j in range(3):
        for r in range(4): a(f"ds_add_f32 v5, v{32+4*j+r} offset:{LO+256*j+64*r}")
    a("s_mov_b64 exec, -1")
    a(f"s_cmp_ge_u32 {sW}, 4\ns_cbranch_scc0 L_oldtail")
    a("s_waitcnt lgkmcnt(0)\ns_barrier      ; B3")
    stamp(7)
    a(f"s_cmp_eq_u32 {sW}, 4\ns_cbranch_scc0 L_notpub")
    for k in range(3): a(f"ds_read_b32 v{60+k}, v{6+k} offset:{LO}")
    a("s_waitcnt lgkmcnt(0)\nbuffer_store_dwordx4 v[60:63], v9, s[20:23], 0 offen sc1")
    stamp(8)
    a("s_branch L_fin")
    a("L_notpub:")
    a(f"s_cmp_eq_u32 {sW}, 5\ns_cbranch_scc0 L_fin\ns_cmp_lt_u32 s2, 160\ns_cbranch_scc0 L_fin")
    a("v_lshrrev_b32 v10, 4, v1\nv_and_b32 v13, 1, v10\nv_lshlrev_b32 v13, 1, v13\nv_lshrrev_b32 v14, 1, v10\nv_add_u32 v13, v13, v14\nv_lshlrev_b32 v13, 1, v13\ns_lshl_b32 s68, s2, 3\nv_add_u32 v13, s68, v13")
    a("global_load_ushort v44, v13, s[54:55]")
    a(f"v_mov_b32 v5, 0\nds_read_b64 v[46:47], v5 offset:{LG}")
    if ymajor=="prod":
        a(f"v_mul_u32_u24 v11, 2560, v1\ns_lshl_b32 s68, s2, 4\ns_add_u32 s68, s68, {YB}\nv_add_u32 v11, s68, v11"); kst=64*2560
    else:
        a(f"v_lshlrev_b32 v11, 4, v1\ns_lshl_b32 s68, s2, 12\ns_add_u32 s68, s68, {YB}\nv_add_u32 v11, s68, v11"); kst=1024
    for k in range(4): a(f"s_mov_b32 s{24+k}, {k*kst}")
    a("s_mov_b32 s68, 0")
    a("L_ypoll:")
    for k in range(4): a(f"buffer_load_dwordx4 v[{64+4*k}:{67+4*k}], v11, s[20:23], s{24+k} offen sc1")
    for k in range(4):
        a(f"s_waitcnt vmcnt({3-k})")
        chk4(64+4*k,60,k==0,62)
    a("v_cmp_ne_u32 vcc, 0, v62\ns_cbranch_vccz L_yok")
    a(f"s_add_u32 s68, s68, 1\ns_cmp_gt_u32 s68, {SPIN}\ns_cbranch_scc0 L_ypoll")
    a("L_yok:")
    stamp(8)
    if diag: a(f"s_mov_b32 s{76+2*10}, s68")
    for r in range(4): a(f"v_add_f32 v{64+r}, v{64+r}, v{68+r}\nv_add_f32 v{72+r}, v{72+r}, v{76+r}")
    for r in range(4): a(f"v_add_f32 v{64+r}, v{64+r}, v{72+r}")
    a("v_permlane32_swap_b32 v64, v65\nv_permlane32_swap_b32 v66, v67\nv_add_f32 v64, v64, v65\nv_add_f32 v66, v66, v67")
    a("v_permlane16_swap_b32 v64, v66\nv_add_f32 v64, v64, v66")
    red16("v_add_f32",[64])
    a("s_waitcnt lgkmcnt(0)\nv_lshlrev_b32 v44, 16, v44\nv_fmac_f32 v64, v47, v44\nv_cvt_pk_bf16_f32 v64, v64, v64")
    a("s_mov_b32 exec_lo, 0x00010001\ns_mov_b32 exec_hi, 0x00010001\nglobal_store_short v13, v64, s[58:59]")
    a("s_cmp_eq_u32 s2, 0\ns_cbranch_scc0 L_fin")
    a(f"s_mov_b64 exec, 1\nv_mov_b32 v5, 0\nv_mov_b32 v6, {sTag}\nbuffer_store_dword v6, v5, s[20:23], 0 offen sc1")
    a("s_branch L_fin")
    a.fence()
    a("L_oldtail:")
    W0=96
    a(f"s_mul_i32 s68, {sH}, 192\ns_mul_i32 s69, {sS}, 24\ns_add_u32 s68, s68, s69\ns_mul_i32 s68, s68, 1280")
    a(f"s_add_u32 s24, s44, s68\ns_addc_u32 s25, s45, 0\ns_and_b32 s25, s25, 0xffff\ns_mov_b32 s26, {24*1280}\ns_mov_b32 s27, 0x20000")
    a(f"s_mul_i32 s68, {sS}, 192\ns_mul_i32 s69, {sH}, 6\ns_add_u32 s68, s68, s69\ns_mul_i32 s68, s68, 1280")
    a(f"s_add_u32 s16, s52, s68\ns_addc_u32 s17, s53, 0\ns_and_b32 s17, s17, 0xffff\ns_mov_b32 s18, {6*1280}\ns_mov_b32 s19, 0x20000")
    a(f"v_lshrrev_b32 v10, 4, v1\nv_and_b32 v12, 15, v1\ns_lshl_b32 s68, {sW}, 8")
    a(f"v_lshl_add_u32 v12, v12, 4, s68")
    a(f"v_mul_u32_u24 v6, {6*1280}, v10\nv_add_u32 v6, v6, v12")
    a(f"v_mul_u32_u24 v7, 1280, v10\nv_add_u32 v7, v7, v12")
    a(f"s_lshl_b32 s68, {sH}, 10\ns_add_u32 s68, s68, {ML}\nv_lshl_add_u32 v8, v3, 7, s68")
    a(f"s_lshl_b32 s68, {sH}, 3\ns_add_u32 s68, s68, {sS}\ns_lshl_b32 s68, s68, 10\ns_add_u32 s68, s68, {H1}\nv_lshl_add_u32 v9, v3, 7, s68\nv_lshl_add_u32 v9, v2, 4, v9")
    a(f"v_and_b32 v11, 15, v1\nv_lshl_add_u32 v11, v11, 1, v10\ns_lshl_b32 s68, {sW}, 5\nv_add_u32 v11, s68, v11")
    if ymajor=="prod":
        a(f"s_mul_i32 s68, s2, 2560\ns_add_u32 s68, s68, {YB}\nv_lshl_add_u32 v11, v11, 4, s68"); g4=128*16
    else:
        a(f"s_lshl_b32 s68, s2, 4\ns_add_u32 s68, s68, {YB}\nv_lshl_add_u32 v11, v11, 12, s68"); g4=128*4096
    a(f"s_and_b32 s68, {sH}, 1\ns_lshl_b32 s68, s68, 1\nv_add_u32 v13, s68, v10\nv_add_u32 v14, 4, v13\nv_min_u32 v14, 7, v14\nv_lshlrev_b32 v13, 2, v13\nv_lshlrev_b32 v14, 2, v14")
    a(f"ds_read_b32 v44, v13 offset:{LHV}\nds_read_b32 v45, v14 offset:{LHV}\nv_mov_b32 v5, 0\nds_read_b64 v[46:47], v5 offset:{LG}")
    a("s_mov_b32 s69, 5120\ns_mov_b32 s28, 1024\ns_mov_b32 s29, 6144")
    a("s_waitcnt lgkmcnt(0)\ns_barrier     ; B2b (old)")
    a("buffer_load_dwordx4 v[52:55], v8, s[20:23], 0 offen sc1")
    def wloads(base,so_lo,so_hi):
        a(f"buffer_load_dwordx4 v[{base+24}:{base+27}], v7, s[16:19], {so_lo} offen nt")
        a(f"buffer_load_dwordx4 v[{base+28}:{base+31}], v7, s[16:19], {so_hi} offen nt")
        for u in range(6):
            so,off=(so_lo,1280*u) if u<4 else (so_hi,1280*(u-4))
            a(f"buffer_load_dwordx4 v[{base+4*u}:{base+4*u+3}], v6, s[24:27], {so} offen offset:{off} nt")
    wloads(W0,"0","s69")
    a(f"s_cmp_eq_u32 {sW}, 0\ns_cbranch_scc0 L_w1")
    wloads(W0+32,"s28","s29")
    a("L_w1:")
    a("s_barrier    ; B3 (old)")
    stamp(7)
    for u in range(2):
        for w in range(4): a(f"v_and_b32 v{64+4*u+w}, v{44+u}, v{16+w}")
    a("s_mov_b32 s68, 0")
    a("s_waitcnt vmcnt(8)")
    a("L_mlpoll:")
    a(f"v_cmp_ne_u32 vcc, {sTag}, v55\ns_cbranch_vccz L_mlok")
    a(f"s_add_u32 s68, s68, 1\ns_cmp_gt_u32 s68, {SPIN}\ns_cbranch_scc1 L_mlok")
    a("buffer_load_dwordx4 v[52:55], v8, s[20:23], 0 offen sc1\ns_waitcnt vmcnt(0)\ns_branch L_mlpoll")
    a("L_mlok:")
    if diag: a(f"s_mov_b32 s{76+2*10+1}, s68")
    a("buffer_load_dwordx4 v[56:59], v9, s[20:23], 0 offen sc1")
    a("v_mov_b32 v54, v52")
    red8("v_max_f32",[54])
    a("v_sub_f32 v52, v52, v54\nv_exp_f32 v52, v52\nv_mul_f32 v53, v52, v53")
    red8("v_add_f32",[53])
    a("v_rcp_f32 v53, v53\nv_mul_f32 v52, v52, v53")
    a("s_waitcnt vmcnt(1)")
    for gi in range(2):
        for u in range(2):
            C="0" if u==0 else f"v[{36+4*gi}:{39+4*gi}]"
            a(f"v_mfma_f32_16x16x32_bf16 v[{36+4*gi}:{39+4*gi}], v[{64+4*u}:{67+4*u}], v[{W0+32*gi+24+4*u}:{W0+32*gi+27+4*u}], {C}")
    for r in range(8): a(f"v_mul_f32 v{36+r}, v47, v{36+r}")
    stamp(8)
    a("s_mov_b32 s68, 0\ns_waitcnt vmcnt(0)")
    a("L_h1poll:")
    a(f"v_cmp_ne_u32 vcc, {sTag}, v59\ns_cbranch_vccz L_h1ok")
    a(f"s_add_u32 s68, s68, 1\ns_cmp_gt_u32 s68, {SPIN}\ns_cbranch_scc1 L_h1ok")
    a("buffer_load_dwordx4 v[56:59], v9, s[20:23], 0 offen sc1\ns_waitcnt vmcnt(0)\ns_branch L_h1poll")
    a("L_h1ok:")
    stamp(9)
    if diag: a(f"s_mov_b32 s{76+2*11}, s68")
    for k in range(3): a(f"v_mul_f32 v{56+k}, v52, v{56+k}")
    red8("v_add_f32",[56,57,58])
    for k in range(3): a(f"v_cvt_pk_bf16_f32 v{56+k}, v{56+k}, v{56+k}")
    for u in range(6):
        for w in range(4):
            if u<3: a(f"v_and_b32 v{64+4*u+w}, v{56+u}, v{16+w}")
            else: a(f"v_and_b32_dpp v{64+4*u+w}, v{56+u-3}, v{16+w} row_ror:8 row_mask:0xf bank_mask:0xf")
        C="0" if u==0 else "v[32:35]"
        a(f"v_mfma_f32_16x16x32_bf16 v[32:35], v[{64+4*u}:{67+4*u}], v[{W0+4*u}:{W0+4*u+3}], {C}")
    a(f"s_cmp_eq_u32 {sW}, 0\ns_cbranch_scc0 L_g1")
    for u in range(6):
        C="0" if u==0 else "v[48:51]"
        a(f"v_mfma_f32_16x16x32_bf16 v[48:51], v[{64+4*u}:{67+4*u}], v[{W0+32+4*u}:{W0+32+4*u+3}], {C}")
    a("L_g1:")
    a("s_nop 7")
    for r in range(4): a(f"v_fmac_f32 v{36+r}, v46, v{32+r}")
    tag4(36)
    a("s_mov_b32 exec_hi, 0\nbuffer_store_dwordx4 v[36:39], v11, s[20:23], 0 offen sc1")
    a(f"s_cmp_eq_u32 {sW}, 0\ns_cbranch_scc0 L_fin")
    for r in range(4): a(f"v_fmac_f32 v{40+r}, v46, v{48+r}")
    tag4(40)
    a(f"s_mov_b32 s69, {g4}\nbuffer_store_dwordx4 v[40:43], v11, s[20:23], s69 offen sc1")
    a("L_fin:")
    if diag:
        a("s_mov_b64 exec, -1")
        a("s_waitcnt vmcnt(0)")
        stamp(1)
        a("s_waitcnt lgkmcnt(0)")
        a(f"s_add_u32 s62, s62, {1610612736-(16<<20)}\ns_addc_u32 s63, s63, 0")
        a(f"s_lshl_b32 s68, s2, 3\ns_add_u32 s68, s68, {sW}\ns_mul_i32 s68, s68, 96\nv_mov_b32 v4, s68")
        for i in range(24): a(f"v_mov_b32 v{64+i}, s{76+i}")
        a("s_mov_b64 exec, 1")
        if diag==2:
            a("v_mov_b32 v5, 0")
            for k,i in enumerate([0,2,4,5,6,7,9,1]):
                a(f"s_cmp_eq_u32 s{76+2*i}, 0\ns_cbranch_scc1 L_sk{k}")
                a(f"global_atomic_umax v5, v{64+2*i}, s[60:61] offset:{4*k}\nv_not_b32 v6, v{64+2*i}\nglobal_atomic_umax v5, v6, s[60:61] offset:{32+4*k}")
                a(f"L_sk{k}:")
        else:
            for i in range(6): a(f"global_store_dwordx4 v4, v[{64+4*i}:{67+4*i}], s[62:63] offset:{16*i}")
    a("L_end:\ns_endpgm")
    a.raw(f""".section .rodata,"a"
.p2align 6
.amdhsa_kernel {NAME}
  .amdhsa_next_free_vgpr 256
  .amdhsa_next_free_sgpr 102
  .amdhsa_accum_offset 256
  .amdhsa_group_segment_fixed_size 0
  .amdhsa_kernarg_size 112
  .amdhsa_user_sgpr_count 2
  .amdhsa_user_sgpr_kernarg_segment_ptr 1
  .amdhsa_system_sgpr_workgroup_id_x 1
.end_amdhsa_kernel""")
    return a.text()

if __name__=="__main__":
    from build import build
    cfgs={"k1h":dict(diag=2),"k1":dict(),"k1d":dict(diag=True),"k1c":dict(ymajor="cons"),"k1cd":dict(ymajor="cons",diag=True)}
    for k,c in cfgs.items():
        open(f"{k}.s","w").write(gen(**c)); build(f"{k}.s")
```

```python
import sys, math
from asmlib import Asm, f32hex
NAME="gated_mix__sliding_block_cached__dense_activation_gelu__decode_kernel"
HS=12582912
XT=0x800; QP=0x1000; HP=0x40000; ML=0x80000; Y2=0x90000; WS_USED=0x100000
LQ=0; LFQ=384; LCD=400; LTG=416; LML=448; LFF=512; LZF=576; LG=640; LHV=768; LO=1024; SLOT=1568; LZ=LO+8*SLOT+64; ZS=640; LDS_SIZE=LZ+8*ZS
SPIN=200000
DPPM="row_mask:0xf bank_mask:0xf"

def gen(diag=False, D=4, nq=21, cprio=2, lp="sc1 nt", gp="sc1", forcesafe=False, shuffle=False,
        nm=40, h1d=3, h1s=2, y2d=2, y2s=0, cpre=4, wpos=(48,48,48,48,48), warm=None, tprio=0, lastfree=1, y2lay="prod", fin="spread", fstride=3, zfull=True, bar=False, Dend=None, nend=44, pk=False, fa=5, prewy=None, dfun=None, ast=7, yprio=0, h1ss=0, st3=None, wbar=None, latehs=True, hsb=60, b0early=False, codepf=0, D0=None, nset=None, ntail=None, spf=0, spfs=128, gF=False, ffall=False, earlyw=False, outf="", gep=False, b0mid=0, mlfast=False, sfirst=False, iw=None, foldF=False):
    a=Asm()
    uid=[0]; ool=[]
    def stamp(i):
        if diag: a(f"s_memrealtime s[{76+2*i}:{77+2*i}]")
    def cnt(i):
        if diag: a(f"s_mov_b32 s{96+i}, s68")
    a.raw(f"; @launch grid=(256,1,1) block=(768,1,1) lds={LDS_SIZE}")
    a.raw('.amdgcn_target "amdgcn-amd-amdhsa--gfx950"\n.text')
    a.raw(f".globl {NAME}\n.p2align 8\n.type {NAME},@function\n{NAME}:")
    a("s_cmp_ge_u32 s2, 256\ns_cbranch_scc1 L_end")
    if shuffle: a("s_and_b32 s3, s2, 7\ns_lshl_b32 s3, s3, 5\ns_lshr_b32 s2, s2, 3\ns_or_b32 s2, s2, s3")
    sW="s3"; sH="s64"; sS="s65"; sTag="s66"; sSW="s67"; sG="s28"; sA="s29"; sMode="s100"; sRG="s101"
    if b0early:
        a(f"v_lshrrev_b32 v2, 6, v0\nv_and_b32 v1, 63, v0\nv_readfirstlane_b32 {sW}, v2")
        if sfirst: a(f"s_add_u32 {sW}, {sW}, 4\ns_cmp_ge_u32 {sW}, 12\ns_cselect_b32 s4, 12, 0\ns_sub_u32 {sW}, {sW}, s4")
        a(f"s_cmp_eq_u32 {sW}, 1\ns_cbranch_scc0 L_noli")
        a(f"v_lshlrev_b32 v9, 2, v1\nv_mov_b32 v52, -1.0\nds_write_b32 v9, v52 offset:{LFQ}\ns_waitcnt lgkmcnt(0)\nL_noli:")
    a("s_load_dwordx16 s[36:51], s[0:1], 0")
    a("s_load_dwordx8 s[52:59], s[0:1], 64")
    a("s_load_dwordx4 s[60:63], s[0:1], 96")
    if not b0early: a(f"v_lshrrev_b32 v2, 6, v0\nv_and_b32 v1, 63, v0\nv_readfirstlane_b32 {sW}, v2")
    if codepf:
        a(f"s_cmp_eq_u32 {sW}, 0\ns_cbranch_scc0 L_nopf\ns_cmp_lt_u32 s2, {codepf}\ns_cbranch_scc0 L_nopf")
        a("s_getpc_b64 s[4:5]\nL_pc:\nv_lshlrev_b32 v4, 7, v1\nv_min_u32 v5, (L_end-L_pc-8192), v4")
        a("global_load_dword v167, v4, s[4:5]\ns_add_u32 s4, s4, 8192\ns_addc_u32 s5, s5, 0\nglobal_load_dword v167, v5, s[4:5]\nL_nopf:")
    stamp(0)
    if diag:
        for i in range(1,12): a(f"s_mov_b64 s[{76+2*i}:{77+2*i}], 0")
    a(f"s_and_b32 {sH}, s2, 31\ns_lshr_b32 {sS}, s2, 5")
    a("v_lshrrev_b32 v2, 3, v1\nv_and_b32 v3, 7, v1")
    if b0early and not b0mid: a("s_barrier   ; B0")
    if spf:
        a(f"s_cmp_eq_u32 {sW}, 3\ns_cbranch_scc0 L_nospf\ns_cmp_lt_u32 s2, {spf}\ns_cbranch_scc0 L_nospf")
        a(f"s_getpc_b64 s[4:5]\nL_pc2:\ns_mov_b32 s6, 128\nL_spf:\ns_load_dword s33, s[4:5], s6\ns_add_u32 s6, s6, {spfs}\ns_cmp_lt_u32 s6, (L_end-L_pc2)\ns_cbranch_scc1 L_spf\nL_nospf:")
    if D0 is None: D0=D
    if nset is None: nset=D0-1
    if ntail is None: ntail=nset+2
    K0=64
    def ids():
        a(f"s_and_b32 {sG}, s2, 7\ns_lshr_b32 {sA}, s2, 3\ns_mul_i32 {sRG}, {sA}, 26\ns_lshr_b32 {sRG}, {sRG}, 8\ns_min_u32 {sRG}, {sRG}, 2")
    def masks():
        a("v_and_b32 v5, 1, v1\nv_lshlrev_b32 v5, 4, v5\nv_mov_b32 v6, 0xffff\nv_lshlrev_b32 v6, v5, v6\nv_lshrrev_b32 v5, 1, v3")
        for w in range(4):
            a(f"v_cmp_eq_u32 vcc, {w}, v5\nv_cndmask_b32 v{16+w}, 0, v6, vcc")
        a("v_mov_b32 v15, 0xff")
    def wssrd(ep=False):
        if not gep: a("s_load_dword s70, s[62:63], 0   ; epoch")
        elif ep: a(f"s_lshl_b32 s71, {sG}, 7\ns_load_dword s70, s[62:63], s71")
        a(f"s_mov_b32 s20, s62\ns_and_b32 s21, s63, 0xffff\ns_mov_b32 s22, {WS_USED}\ns_mov_b32 s23, 0x20000")
        a("s_mov_b32 s30, 0x0c0c0400\ns_mov_b32 s31, 0x04000c0c")
    def tagcalc(phase2=False, fromv=None):
        if fromv: a(f"v_readfirstlane_b32 s70, {fromv}")
        else:
            a("s_waitcnt lgkmcnt(0)")
            a(f"s_and_b32 s72, s70, 0x7f7f7f7f\ns_add_u32 s72, s72, 0x01010101\ns_and_b32 s73, s70, 0x80808080\ns_xor_b32 s70, s72, s73")
        if phase2: a(f"s_xor_b32 {sTag}, s70, 0x80808080")
        else: a(f"s_mov_b32 {sTag}, s70")
        a(f"s_lshr_b32 s73, {sTag}, 8\ns_lshr_b32 s74, {sTag}, 16\ns_lshr_b32 s75, {sTag}, 24\ns_mov_b32 s72, {sTag}")
    def tag4(r):
        for k in range(4): a(f"v_bfi_b32 v{r+k}, v15, s{72+k}, v{r+k}")
    def chk4(r,t0,first,accreg):
        a(f"v_perm_b32 v{t0}, v{r+1}, v{r}, s30\nv_perm_b32 v{t0+1}, v{r+3}, v{r+2}, s31")
        a(f"v_or_b32 v{t0}, v{t0}, v{t0+1}")
        if first: a(f"v_xor_b32 v{accreg}, {sTag}, v{t0}")
        else: a(f"v_xor_b32 v{t0}, {sTag}, v{t0}\nv_or_b32 v{accreg}, v{accreg}, v{t0}")
    def chk1(r):
        a(f"v_perm_b32 v52, v{r+1}, v{r}, s30\nv_perm_b32 v53, v{r+3}, v{r+2}, s31\nv_or_b32 v52, v52, v53\nv_cmp_ne_u32 vcc, {sTag}, v52")
    M8=("quad_perm:[1,0,3,2]","quad_perm:[2,3,0,1]","row_half_mirror")
    def red8(op,r,mods=M8):
        for mod in mods:
            for x in r: a(f"{op}_dpp v{x}, v{x}, v{x} {mod} {DPPM}")
    def red16(op,r):
        red8(op,r,M8+("row_mirror",))
    def redrows(op,x,t):
        a(f"v_mov_b32 v{t}, v{x}\nv_permlane16_swap_b32 v{x}, v{t}\n{op} v{x}, v{x}, v{t}")
        a(f"v_mov_b32 v{t}, v{x}\nv_permlane32_swap_b32 v{x}, v{t}\n{op} v{x}, v{x}, v{t}")
    def spin_tail(loop, ok, sleep=0):
        a(f"s_cbranch_vccz {ok}")
        if sleep: a(f"s_sleep {sleep}")
        a(f"s_add_u32 s68, s68, 1\ns_cmp_gt_u32 s68, {SPIN}\ns_cbranch_scc0 {loop}")
        a(f"{ok}:")
    def lstore(txt):
        uid[0]+=1; u=uid[0]
        if ffall:
            a(f"s_cmp_eq_u32 {sMode}, 0\ns_cbranch_scc0 L_sf{u}\n{txt}\nL_sd{u}:")
            ool.append(f"L_sf{u}:\n{txt} sc1\ns_branch L_sd{u}")
        else: a(f"s_cmp_eq_u32 {sMode}, 0\ns_cbranch_scc1 L_sf{u}\n{txt} sc1\ns_branch L_sd{u}\nL_sf{u}:\n{txt}\nL_sd{u}:")
    RING=[88,92,96,100]
    def ring(name, depth, load, check, first, sleep0=0, sleep=0, mid=None):
        a("s_mov_b32 s68, 0")
        for i in range(depth):
            if sleep0: a(f"s_sleep {sleep0}")
            load(RING[i])
        if mid: mid(depth)
        a(f"L_{name}_loop:")
        for i in range(depth):
            a(f"s_waitcnt vmcnt({depth-1})")
            check(RING[i])
            a(f"s_cbranch_vccz L_{name}_ok{i}")
            if sleep: a(f"s_sleep {sleep}")
            load(RING[i])
        a(f"s_add_u32 s68, s68, 1\ns_cmp_gt_u32 s68, {SPIN}\ns_cbranch_scc0 L_{name}_loop")
        for i in reversed(range(depth)):
            a.fence()
            a(f"L_{name}_ok{i}:")
            first(RING[i])
            if i: a(f"s_branch L_{name}_done")
        a(f"L_{name}_done:")

    if b0mid==2: a(f"s_cmp_lt_u32 {sW}, 4\ns_cbranch_scc0 L_sw\ns_barrier\ns_branch L_ctl\nL_sw:")
    else: a(f"s_cmp_lt_u32 {sW}, 4\ns_cbranch_scc1 L_ctl")
    a(f"s_sub_u32 {sSW}, {sW}, 4")
    if yprio: a(f"s_cmp_lt_u32 {sSW}, 4\ns_cbranch_scc1 L_yp\ns_setprio {yprio}\nL_yp:")
    a("v_mul_u32_u24 v4, 384, v2\nv_lshl_add_u32 v4, v3, 4, v4")
    a(f"s_lshl_b32 s68, {sSW}, 3\ns_add_u32 s68, s68, {sS}\ns_mul_i32 s68, s68, 3072")
    a(f"s_mul_i32 s69, {sH}, {HS}\ns_add_u32 s69, s69, s68\ns_add_u32 s69, s69, {28672*384}")
    a(f"s_mov_b32 s6, {7*196608+3072}\ns_mov_b32 s7, 0x20000\ns_mov_b32 s10, {7*196608+3072}\ns_mov_b32 s11, 0x20000")
    a("s_waitcnt lgkmcnt(0)")
    a("s_add_u32 s4, s38, s69\ns_addc_u32 s5, s39, 0\ns_and_b32 s5, s5, 0xffff")
    seq=[]
    for n in range(49):
        for i,p in enumerate(wpos):
            if p==n: seq.append(("w",i))
        if n<48: seq.append(("kv",n))
    N=len(seq)
    idx={x:i for i,x in enumerate(seq)}
    hooks={n:[] for n in range(N)}
    WR=64
    last_kv=idx[("kv",47)]
    def waitn(n):
        if n<D0: return None
        d=D if (Dend is None or n<nend) else min(Dend, D+(n-nend+1))
        if dfun: d=max(d,eval(dfun))
        if n>N-1-lastfree and n-d>last_kv: return None
        return d-1
    def ready(k):
        for n in range(N):
            w=waitn(n)
            if w is not None and n-w-1>=k: return n
        return 99
    def setup():
        if not b0early: a("s_barrier    ; B0")
        a("s_add_u32 s8, s40, s69\ns_addc_u32 s9, s41, 0\ns_and_b32 s9, s9, 0xffff")
        ids(); wssrd(); masks()
        a(f"v_and_b32 v6, 16, v1\nv_lshl_add_u32 v6, v3, 5, v6\nv_lshrrev_b32 v7, 5, v1")
        a(f"v_mul_u32_u24 v5, 768, v7\nv_add_u32 v5, v5, v6\ns_mul_i32 s68, {sSW}, {SLOT}\nv_add_u32 v5, s68, v5")
        a(f"v_lshl_add_u32 v12, v7, 8, v6\ns_mul_i32 s68, {sSW}, {ZS}\nv_add_u32 v12, s68, v12")
        a(f"v_mul_u32_u24 v6, {SLOT}, v3\nv_lshl_add_u32 v6, v2, 4, v6\ns_mul_i32 s68, {sSW}, 96\nv_add_u32 v6, s68, v6")
        if fin=="acc": a(f"v_mul_u32_u24 v36, {ZS}, v2\nv_lshl_add_u32 v36, v3, 4, v36\ns_and_b32 s68, {sSW}, 1\ns_lshl_b32 s68, s68, 7\nv_add_u32 v36, s68, v36")
        elif zfull: a(f"v_lshrrev_b32 v36, 4, v1\nv_mul_u32_u24 v36, {2*ZS}, v36\nv_and_b32 v8, 15, v1\nv_lshl_add_u32 v36, v8, 4, v36")
        else: a(f"v_mul_u32_u24 v36, {ZS}, v3\nv_lshl_add_u32 v36, v2, 4, v36\ns_and_b32 s68, {sSW}, 1\ns_lshl_b32 s68, s68, 7\nv_add_u32 v36, s68, v36")
        a(f"v_lshlrev_b32 v7, 3, v3\ns_lshl_b32 s68, {sSW}, 3\nv_mov_b32 v8, s68\nv_mov_b32 v9, 0")
        a(f"s_lshl_b32 s68, {sH}, 3\ns_add_u32 s68, s68, {sSW}\ns_mul_i32 s68, s68, 768\ns_lshl_b32 s69, {sS}, 4\ns_add_u32 s68, s68, s69\ns_add_u32 s68, s68, {QP}\nv_lshl_add_u32 v10, v2, 7, s68")
        a("v_lshlrev_b32 v11, 4, v3\ns_mov_b32 s32, 0x00ff00ff\ns_mov_b32 s33, 0x00ff00ff")
        a("s_mov_b32 s46, 0x00ff00ff\ns_mov_b32 s47, 0xff00ff00\ns_mov_b64 s[36:37], -1\ns_mov_b32 s48, 0x01010101\ns_mov_b32 s49, 0x00000101")
    if b0mid: hooks[D0-1].append(lambda: a("s_barrier   ; B0"))
    hooks[nset].append(setup)
    def tailsetup():
        a(f"s_lshl_b32 s68, {sRG}, 3\ns_add_u32 s68, s68, {sSW}\ns_mul_i32 s69, s68, 43\ns_lshr_b32 s69, s69, 8")
        a(f"s_mul_i32 s25, s69, 6\ns_sub_u32 s25, s68, s25\ns_lshl_b32 s69, s69, 3\ns_add_u32 s69, s69, {sG}")
        a(f"s_mul_i32 s26, {sRG}, 10\ns_sub_u32 s26, {sA}, s26")
        a(f"s_mul_i32 s27, s69, 6\ns_add_u32 s27, s27, s25\ns_mul_i32 s27, s27, {32*1280}\ns_lshl_b32 s24, s26, 7\ns_add_u32 s27, s27, s24")
        a(f"s_add_u32 s12, s44, s27\ns_addc_u32 s13, s45, 0\ns_and_b32 s13, s13, 0xffff\ns_cmp_lt_u32 {sA}, 30\ns_cselect_b32 s14, {31*1280+128}, 0\ns_cselect_b32 s18, {7*1280+128}, 0\ns_mov_b32 s15, 0x20000\ns_mov_b32 s19, 0x20000")
        a(f"s_mul_i32 s27, {sG}, 24\ns_add_u32 s27, s27, s68\ns_mul_i32 s27, s27, {8*1280}\ns_add_u32 s27, s27, s24")
        a(f"s_add_u32 s16, s52, s27\ns_addc_u32 s17, s53, 0\ns_and_b32 s17, s17, 0xffff")
        a(f"v_mul_u32_u24 v38, 1280, v2\nv_lshl_add_u32 v37, v38, 2, v11\nv_add_u32 v38, v38, v11")
        a(f"s_cmp_lt_u32 {sA}, 30\ns_cbranch_scc0 L_ts1")
        a(f"s_mul_i32 s69, s69, {8*768}\ns_lshl_b32 s25, s25, 10\ns_add_u32 s69, s69, s25\ns_add_u32 s69, s69, {QP}")
        a(f"v_lshl_add_u32 v14, v1, 4, s69")
        ps,gsh=(2560,4) if y2lay=="prod" else (16,9)
        a(f"s_lshl_b32 s69, {sRG}, 3\ns_add_u32 s69, s69, {sG}\ns_mul_i32 s69, s69, {ps}\ns_lshl_b32 s26, s26, {gsh+4}\ns_add_u32 s69, s69, s26\ns_and_b32 s26, {sSW}, 1\ns_lshl_b32 s26, s26, {gsh+3}\ns_add_u32 s69, s69, s26\ns_add_u32 s69, s69, {Y2}\nv_lshl_add_u32 v13, v2, {gsh}, s69")
        if zfull: a("v_lshl_add_u32 v13, v1, 2, s69")
        if fin=="acc":
            a(f"s_lshr_b32 s25, s24, 6\ns_and_b32 s26, {sSW}, 1\ns_add_u32 s25, s25, s26\ns_lshl_b32 s26, s25, {ast+2}\ns_add_u32 s26, s26, {Y2}")
            a(f"v_lshrrev_b32 v164, 4, v1\nv_lshl_add_u32 v13, v164, {ast}, s26\nv_and_b32 v165, 15, v1\nv_lshl_add_u32 v13, v165, 2, v13")
            a("v_and_b32 v165, 1, v164\nv_lshrrev_b32 v164, 1, v164\nv_lshl_add_u32 v164, v165, 1, v164\nv_lshl_add_u32 v164, v3, 2, v164\ns_lshl_b32 s26, s25, 6\nv_lshl_add_u32 v164, v164, 1, s26")
            a("global_load_ushort v40, v164, s[54:55]\ns_mov_b32 s24, s25")
        a("s_branch L_ts2\nL_ts1:")
        if fin=="acc": a("v_mov_b32 v164, 0")
        a(f"s_sub_u32 s68, s2, 240\ns_mul_i32 s68, s68, 5\ns_min_u32 s69, {sSW}, 4\ns_add_u32 s68, s68, s69")
        a(f"v_and_b32 v14, 31, v1\nv_min_u32 v14, 23, v14\nv_mul_u32_u24 v14, {ps}, v14\nv_lshrrev_b32 v13, 5, v1\nv_lshl_add_u32 v14, v13, {gsh}, v14\ns_lshl_b32 s69, s68, {gsh+1}\ns_add_u32 s69, s69, {Y2}\nv_add_u32 v14, s69, v14")
        a("v_lshrrev_b32 v13, 4, v1\ns_lshl_b32 s69, s68, 4\nv_lshl_add_u32 v13, v13, 2, s69")
        a("global_load_dword v40, v13, s[54:55]")
        a("L_ts2:")
        if fin=="atom":
            a(f"s_sub_u32 s68, s2, {8*fa}\ns_cmp_eq_u32 {sSW}, 2\ns_cselect_b32 s24, 1, 0\ns_cmp_lt_u32 s68, 40\ns_cselect_b32 s24, s24, 0")
            a("v_mov_b32 v164, 0\ns_cmp_eq_u32 s24, 0\ns_cbranch_scc1 L_ts3")
            a(f"v_mul_u32_u24 v164, 2560, v2\nv_lshl_add_u32 v164, v3, 3, v164\ns_lshl_b32 s69, s68, 6\ns_add_u32 s69, s69, {Y2}\nv_add_u32 v164, s69, v164")
            a("s_lshr_b32 s25, s68, 2\ns_lshl_b32 s25, s25, 7\ns_and_b32 s26, s68, 1\ns_lshl_b32 s26, s26, 2\ns_add_u32 s25, s25, s26\ns_and_b32 s26, s68, 2\ns_add_u32 s25, s25, s26")
            a("v_lshrrev_b32 v13, 5, v1\nv_lshl_add_u32 v13, v3, 1, v13\nv_lshl_add_u32 v13, v13, 3, s25")
            a("global_load_ushort v40, v13, s[54:55]")
            a("L_ts3:")
        if fin=="spread":
            inv=(65536+fstride-1)//fstride if fstride else 0
            if fstride: a(f"s_mul_i32 s68, s2, {inv}\ns_lshr_b32 s68, s68, 16\ns_mul_i32 s69, s68, {fstride}\ns_cmp_eq_u32 s69, s2\ns_cselect_b32 s24, 1, 0\ns_cmp_eq_u32 {sSW}, 2\ns_cselect_b32 s24, s24, 0\ns_cmp_lt_u32 s68, 80\ns_cselect_b32 s24, s24, 0")
            else: a(f"s_lshr_b32 s68, {sA}, 2\ns_lshl_b32 s68, s68, 3\ns_add_u32 s68, s68, {sG}\ns_lshl_b32 s68, s68, 2\ns_and_b32 s69, {sA}, 3\ns_add_u32 s68, s68, s69\ns_cmp_eq_u32 {sSW}, 2\ns_cselect_b32 s24, 1, 0\ns_cmp_lt_u32 s68, 80\ns_cselect_b32 s24, s24, 0")
            a("v_mov_b32 v164, 0\ns_cmp_eq_u32 s24, 0\ns_cbranch_scc1 L_ts3")
            a(f"v_and_b32 v164, 31, v1\nv_min_u32 v164, 23, v164\nv_mul_u32_u24 v164, {ps}, v164\nv_lshrrev_b32 v13, 5, v1\nv_lshl_add_u32 v164, v13, {gsh}, v164\ns_lshl_b32 s69, s68, {gsh+1}\ns_add_u32 s69, s69, {Y2}\nv_add_u32 v164, s69, v164")
            if zfull:
                a("s_lshl_b32 s69, s68, 1\nv_add_u32 v13, s69, v13\nv_and_b32 v13, 3, v13\nv_lshlrev_b32 v13, 5, v13\nv_and_b32 v40, 16, v1\nv_add_u32 v13, v13, v40")
                a("s_lshr_b32 s25, s68, 3\ns_lshl_b32 s25, s25, 7\ns_bfe_u32 s26, s68, 0x10001\ns_lshl_b32 s26, s26, 2\ns_add_u32 s25, s25, s26\ns_bfe_u32 s26, s68, 0x10002\ns_lshl_b32 s26, s26, 1\ns_add_u32 s25, s25, s26\nv_add_u32 v13, s25, v13")
                a("global_load_ushort v40, v13, s[54:55]\nglobal_load_ushort v165, v13, s[54:55] offset:8")
            else:
                a("v_lshrrev_b32 v13, 4, v1\ns_lshl_b32 s69, s68, 4\nv_lshl_add_u32 v13, v13, 2, s69")
                a("global_load_dword v40, v13, s[54:55]")
            a("L_ts3:")
        a(f"s_lshl_b32 s68, {sSW}, 5\nv_lshl_add_u32 v39, v2, 2, s68")
    hooks[ntail].append(tailsetup)
    def qcheck():
        stamp(2)
        a("s_mov_b32 s68, 0")
        a("L_qw:")
        a(f"ds_read_b96 v[52:54], v9 offset:{LFQ}")
        for j in range(3): a(f"ds_read_b128 v[{20+4*j}:{23+4*j}], v11 offset:{LQ+128*j}")
        a("s_waitcnt lgkmcnt(0)\nv_min3_f32 v52, v52, v53, v54\nv_cmp_gt_f32 vcc, 0, v52")
        spin_tail("L_qw","L_qr",1)
        cnt(0)
        if st3 is None: stamp(3)
    if st3 is not None: hooks[st3].append(lambda: stamp(3))
    def modecheck():
        a("s_mov_b32 s68, 0\nL_smw:")
        a(f"ds_read_b128 v[52:55], v9 offset:{LCD}\nds_read_b32 v56, v9 offset:{LFQ+12}\nds_read_b64 v[42:43], v9 offset:{LG}\nds_read_b32 v41, v39 offset:{LHV}")
        if gep: a(f"ds_read_b32 v57, v9 offset:{LTG+4}")
        a("s_waitcnt lgkmcnt(0)\nv_min3_f32 v52, v52, v53, v54\nv_min_f32 v52, v52, v55\nv_cmp_gt_f32 vcc, 0, v52")
        spin_tail("L_smw","L_smok",1)
        a(f"v_readfirstlane_b32 {sMode}, v56")
        tagcalc(True, "v57" if gep else None)
        for w in range(4): a(f"v_and_b32 v{160+w}, v41, v{16+w}")
        if zfull: a(f"v_and_b32 v166, 3, v1\nv_lshlrev_b32 v166, 3, v166\nv_lshrrev_b32 v166, v166, {sTag}")
    hooks[nm].append(modecheck)
    def prewy_f():
        a(f"s_cmp_eq_u32 {sSW}, 0\ns_cbranch_scc0 L_npw\ns_cmp_lt_u32 {sA}, 30\ns_cbranch_scc0 L_npw\nv_not_b32 v167, v166\nbuffer_store_dword v167, v13, s[20:23], 0 offen sc1\nL_npw:")
    if prewy is not None:
        assert prewy>=nm
        hooks[prewy].append(prewy_f)
    sc=f32hex(192**-0.5)
    def qk(t):
        def f():
            x,y=44+t,45+t
            a(f"v_mov_b32 v{x}, 0\nv_mov_b32 v{y}, 0")
            for j in range(3):
                for w in range(4):
                    for tt in (t,t+1): a(f"v_dot2c_f32_bf16 v{44+tt}, v{K0+12*tt+4*j+w}, v{20+4*j+w}")
            red8("v_add_f32",[x,y])
            a(f"v_cvt_pk_bf16_f32 v52, v{x}, v{y}\nv_lshlrev_b32 v{x}, 16, v52\nv_and_b32 v{y}, 0xffff0000, v52\nv_mul_f32 v{x}, {sc}, v{x}\nv_mul_f32 v{y}, {sc}, v{y}")
            a(f"v_cvt_pk_bf16_f32 v52, v{x}, v{y}\nv_lshlrev_b32 v{x}, 16, v52\nv_and_b32 v{y}, 0xffff0000, v52")
        return f
    def afrag(t):
        a(f"v_cvt_pk_bf16_f32 v{44+t}, v{44+t}, v{44+t}")
        for w in range(4): a(f"v_and_b32 v{32+w}, v{44+t}, v{16+w}")
    def softmax():
        a("v_max3_f32 v52, v44, v45, v46\nv_max3_f32 v53, v47, v48, v49\nv_max3_f32 v52, v52, v50, v51\nv_max_f32 v52, v52, v53")
        a(f"v_max_f32_dpp v52, v52, v52 row_ror:8 {DPPM}")
        redrows("v_max_f32",52,53)
        a(f"s_mov_b32 s68, {f32hex(math.log2(math.e))}\nv_mul_f32 v52, s68, v52")
        for t in range(8): a(f"v_fma_f32 v{44+t}, v{44+t}, s68, -v52")
        for t in range(8): a(f"v_exp_f32 v{44+t}, v{44+t}")
        a("v_add_f32 v53, v44, v45\nv_add_f32 v54, v46, v47\nv_add_f32 v55, v48, v49\nv_add_f32 v56, v50, v51\nv_add_f32 v53, v53, v54\nv_add_f32 v55, v55, v56\nv_add_f32 v53, v53, v55")
        a(f"v_add_f32_dpp v53, v53, v53 row_ror:8 {DPPM}")
        redrows("v_add_f32",53,54)
        a(f"ds_write_b64 v8, v[52:53] offset:{LML}")
        afrag(0)
        stamp(4)
    def mf(t,j):
        C="0" if t==0 else f"v[{20+4*j}:{23+4*j}]"
        r=K0+12*t+4*j
        a(f"v_mfma_f32_16x16x32_bf16 v[{20+4*j}:{23+4*j}], v[32:35], v[{r}:{r+3}], {C}")
    def pv(t):
        def f():
            for j in range(3): mf(t,j)
            if foldF and t==6:
                a("s_waitcnt lgkmcnt(0)\nv_mul_f32 v51, v59, v51")
            afrag(t+1)
            if foldF and t==6:
                for k in range(6): a(f"v_pk_mul_f32 v[{20+2*k}:{21+2*k}], v[{20+2*k}:{21+2*k}], v[58:59] op_sel:[0,1] op_sel_hi:[1,1]")
        return f
    hooks[nq].append(qcheck)
    pos=nq
    for t in (0,2,4,6):
        pos=max(pos, ready(3*(t+1)+2))
        assert pos < 24+3*t, (pos,t)
        hooks[pos].append(qk(t)); pos+=1
    hooks[pos].append(softmax); pos+=1
    assert nm>=pos
    pend=[]
    for t in range(7):
        k=idx[("kv",24+3*t+2)]
        p=max(pos, ready(k))
        if p<N and not pend:
            hooks[p].append(pv(t)); pos=p
            if t==6 and foldF: assert p>=wbar
            if t==1: assert p<min(idx[("w",i)] for i in range(5))
        else: pend.append((k,pv(t)))
    for j in range(3):
        k=idx[("kv",45+j)]
        p=max(pos, ready(k))
        fn=(lambda j=j: mf(7,j))
        if p<N and not pend: hooks[p].append(fn); pos=p
        else: pend.append((k,fn))
    def warmpoll():
        a(f"s_cmp_lt_u32 {sA}, 30\ns_cbranch_scc1 L_nw\nbuffer_load_dwordx4 v[164:167], v14, s[20:23], 0 offen {gp}\nL_nw:")
    if warm is not None: hooks[warm].append(warmpoll)
    for n,(kind,k) in enumerate(seq):
        w=waitn(n)
        if kind=="kv":
            t,j=(k%24)//3,k%3
            srd=4 if k<24 else 8
            if j==0: a(f"s_mov_b32 s71, {t*196608}")
            if w is not None: a(f"s_waitcnt vmcnt({w})")
            r=K0+12*t+4*j
            a(f"buffer_load_dwordx4 v[{r}:{r+3}], v4, s[{srd}:{srd+3}], s71 offen offset:{128*j} nt")
        else:
            if w is not None: a(f"s_waitcnt vmcnt({w})")
            if k==0: a(f"buffer_load_dwordx4 v[{WR}:{WR+3}], v38, s[16:19], 0 offen nt")
            else: a(f"buffer_load_dwordx4 v[{WR+4*k}:{WR+4*k+3}], v37, s[12:15], 0 offen offset:{1280*(k-1)} nt")
        if n==last_kv:
            stamp(5)
            if tprio: a(f"s_setprio {tprio}")
        if wbar is not None and n==wbar:
            a("s_barrier")
            if foldF: a(f"ds_read_b32 v59, v8 offset:{LFF+4}")
        for h in hooks[n]: h()
    for k,fn in pend:
        a(f"s_waitcnt vmcnt({N-1-k})"); fn()
    stamp(6)
    a("L_stail:")
    BAR="s_barrier" if iw is None else None
    def barrier():
        if iw is None: a("s_barrier")
        else:
            uid[0]+=1
            a(f"s_cbranch_execz L_nb{uid[0]}\ns_barrier\nL_nb{uid[0]}:")
    a("s_mov_b64 exec, s[46:47]")
    for j in range(3): a(f"ds_write_b128 v5, v[{20+4*j}:{23+4*j}] offset:{LO+256*j}")
    if bar:
        a("s_mov_b64 exec, s[36:37]\ns_waitcnt lgkmcnt(0)"); barrier()
        a(f"ds_read_b128 v[60:63], v6 offset:{LO}\nds_read_b128 v[52:55], v6 offset:{LO+768}")
        if not foldF: a(f"ds_read_b64 v[58:59], v7 offset:{LFF}")
    else:
        a(f"s_mov_b64 exec, -1\nds_write_b32 v8, v9 offset:{LFF}")
        a("L_rw:")
        a(f"ds_read_b64 v[58:59], v7 offset:{LFF}")
        a(f"ds_read_b128 v[60:63], v6 offset:{LO}\nds_read_b128 v[52:55], v6 offset:{LO+768}")
        a(f"s_waitcnt lgkmcnt({0 if diag else 2})\nv_min_f32 v58, v58, v59\nv_cmp_gt_f32 vcc, 0, v58")
        spin_tail("L_rw","L_rr")
        cnt(1)
    a("s_waitcnt lgkmcnt(0)")
    if pk:
        a("v_pk_add_f32 v[60:61], v[60:61], v[52:53]\nv_pk_add_f32 v[62:63], v[62:63], v[54:55]")
        if not foldF: a("v_pk_mul_f32 v[60:61], v[60:61], v[58:59] op_sel:[0,1] op_sel_hi:[1,1]\nv_pk_mul_f32 v[62:63], v[62:63], v[58:59] op_sel:[0,1] op_sel_hi:[1,1]")
    else:
        for k in range(4): a(f"v_add_f32 v{60+k}, v{60+k}, v{52+k}")
        for k in range(4): a(f"v_mul_f32 v{60+k}, v59, v{60+k}")
    red8("v_add_f32",[60,61,62,63])
    tag4(60)
    a("s_mov_b64 exec, s[48:49]")
    lstore("buffer_store_dwordx4 v[60:63], v10, s[20:23], 0 offen")
    a("s_mov_b64 exec, s[36:37]")
    stamp(7)
    a(f"s_cmp_lt_u32 {sA}, 30\ns_cbranch_scc0 {'L_final' if fin=='x' else 'L_fin'}")
    def bpart(depth):
        a(f"s_waitcnt vmcnt({N-1-idx[('w',0)]+1+depth})")
        a(f"v_mfma_f32_16x16x32_bf16 v[24:27], v[160:163], v[{WR}:{WR+3}], 0")
        for r in range(4): a(f"v_mul_f32 v{24+r}, v43, v{24+r}")
        if diag and st3 is None:
            a(f"s_waitcnt vmcnt({1+depth})"); stamp(3)
            a(f"s_waitcnt vmcnt({depth})"); stamp(2)
    ring("h1",h1d,lambda r:a(f"buffer_load_dwordx4 v[{r}:{r+3}], v14, s[20:23], 0 offen {lp}"),chk1,
         lambda r:[a(f"v_add_f32_dpp v{56+k}, v{r+k}, v{r+k} {M8[0]} {DPPM}") for k in range(4)], sleep0=h1s, sleep=h1ss, mid=bpart)
    stamp(8)
    cnt(2)
    red8("v_add_f32",[56,57,58,59],M8[1:])
    for t in range(4): a(f"v_cvt_pk_bf16_f32 v{56+t}, v{56+t}, v{56+t}")
    AF=[32,44,48,52]
    for t in range(4):
        for w in range(4): a(f"v_and_b32 v{AF[t]+w}, v{56+t}, v{16+w}")
        if t>0:
            DD="v[24:27]" if gF else "v[20:23]"
            C="0" if (t==1 and not gF) else DD
            a(f"v_mfma_f32_16x16x32_bf16 {DD}, v[{AF[t-1]}:{AF[t-1]+3}], v[{WR+4*t}:{WR+4*t+3}], {C}")
    a(f"v_mfma_f32_16x16x32_bf16 {DD}, v[{AF[3]}:{AF[3]+3}], v[{WR+16}:{WR+19}], {DD}")
    if fin=="acc": a(f"v_mov_b32 v58, 1.0\nv_mov_b32 v59, {f32hex(23.0)}\ns_cmp_lt_u32 {sSW}, 2")
    a("s_mov_b64 exec, s[46:47]")
    if not gF:
        for r in range(4): a(f"v_fmac_f32 v{24+r}, v42, v{20+r}")
    a(f"ds_write_b128 v12, v[24:27] offset:{LZ}")
    if fin=="acc":
        assert bar
        a(f"s_mov_b64 exec, s[36:37]\ns_waitcnt lgkmcnt(0)"); barrier(); a("s_cbranch_scc0 L_fin")
        a(f"ds_read_b128 v[60:63], v36 offset:{LZ}\nds_read_b128 v[52:55], v36 offset:{LZ+256}\ns_waitcnt lgkmcnt(0)")
        if pk: a("v_pk_add_f32 v[60:61], v[60:61], v[52:53]\nv_pk_add_f32 v[62:63], v[62:63], v[54:55]")
        else:
            for k in range(4): a(f"v_add_f32 v{60+k}, v{60+k}, v{52+k}")
        a("v_permlane32_swap_b32 v60, v61\nv_permlane32_swap_b32 v62, v63\nv_add_f32 v60, v60, v61\nv_add_f32 v62, v62, v63")
        a("v_permlane16_swap_b32 v60, v62\nv_add_f32 v60, v60, v62")
        a("v_add_f32_dpp v58, v60, v60 row_ror:8 row_mask:0xf bank_mask:0x3")
        a("buffer_atomic_add_f32 v58, v13, s[20:23], 0 offen sc0 sc1")
        stamp(9)
        a(f"v_add_f32_dpp v61, v60, v60 row_ror:8 {DPPM}\nv_lshlrev_b32 v40, 16, v40\nv_fmac_f32 v61, v43, v40")
        a("s_waitcnt vmcnt(0)")
        a(f"v_cmp_eq_f32 vcc, v59, v58\nv_add_f32 v61, v61, v58\nv_cvt_pk_bf16_f32 v61, v61, v61\ns_lshr_b64 vcc, vcc, 8")
        a("s_and_b64 exec, vcc, s[32:33]\ns_cbranch_execz L_fin")
        a(f"global_store_short v164, v61, s[58:59] {outf}")
        stamp(5)
        if not gep:
            a("s_cmp_eq_u32 s24, 0\ns_cbranch_scc0 L_fin\ns_and_b64 exec, exec, 1\ns_cbranch_execz L_fin")
            a(f"v_mov_b32 v52, s70\nbuffer_store_dword v52, v9, s[20:23], 0 offen sc1")
        a("s_branch L_fin" if diag else "s_endpgm")
        mark0=len(a.lines)
    nz=1 if zfull else 2
    if bar: a("s_mov_b64 exec, -1\ns_waitcnt lgkmcnt(0)\ns_barrier")
    else: a(f"s_mov_b64 exec, -1\nds_write_b32 v8, v9 offset:{LZF}")
    a(f"s_cmp_lt_u32 {sSW}, {nz}\ns_cbranch_scc0 {'L_fin' if fin=='x' else 'L_final'}")
    if not bar:
        a("L_zw:")
        a(f"ds_read_b32 v58, v7 offset:{LZF}")
    a(f"ds_read_b128 v[60:63], v36 offset:{LZ}\nds_read_b128 v[52:55], v36 offset:{LZ+256}")
    if zfull: a(f"ds_read_b128 v[44:47], v36 offset:{LZ+ZS}\nds_read_b128 v[48:51], v36 offset:{LZ+ZS+256}")
    if not bar:
        a(f"s_waitcnt lgkmcnt({0 if diag else (4 if zfull else 2)})\nv_cmp_gt_f32 vcc, 0, v58")
        spin_tail("L_zw","L_zr")
    if zfull:
        a(f"s_waitcnt lgkmcnt({0 if diag else 2})")
        if pk:
            a("v_pk_add_f32 v[60:61], v[60:61], v[52:53]\nv_pk_add_f32 v[62:63], v[62:63], v[54:55]\ns_waitcnt lgkmcnt(0)")
            a("v_pk_add_f32 v[44:45], v[44:45], v[48:49]\nv_pk_add_f32 v[46:47], v[46:47], v[50:51]")
            a("v_pk_add_f32 v[60:61], v[60:61], v[44:45]\nv_pk_add_f32 v[62:63], v[62:63], v[46:47]")
        else:
            for k in range(4): a(f"v_add_f32 v{60+k}, v{60+k}, v{52+k}")
            a(f"s_waitcnt lgkmcnt({0 if diag else 1})")
            for k in range(4): a(f"v_add_f32 v{60+k}, v{60+k}, v{44+k}")
            a("s_waitcnt lgkmcnt(0)")
            for k in range(4): a(f"v_add_f32 v{60+k}, v{60+k}, v{48+k}")
        a("v_permlane32_swap_b32 v60, v61\nv_permlane32_swap_b32 v62, v63\nv_add_f32 v60, v60, v61\nv_add_f32 v62, v62, v63")
        a("v_permlane16_swap_b32 v60, v62\nv_add_f32 v60, v60, v62\nv_bfi_b32 v60, v15, v166, v60")
        a("buffer_store_dword v60, v13, s[20:23], 0 offen sc1")
    else:
        a("s_waitcnt lgkmcnt(0)")
        for k in range(4): a(f"v_add_f32 v{60+k}, v{60+k}, v{52+k}")
        red8("v_add_f32",[60,61,62,63])
        tag4(60)
        a("s_mov_b32 exec_lo, 0x01010101\ns_mov_b32 exec_hi, 0x01010101\nbuffer_store_dwordx4 v[60:63], v13, s[20:23], 0 offen sc1")
    stamp(9)
    a("s_branch L_fin")
    a.fence()
    a("L_final:")
    if fin=="atom":
        assert bar and zfull
        a("s_cmp_eq_u32 s24, 0\ns_cbranch_scc1 L_fin\ns_waitcnt vmcnt(0)")
        a(f"v_lshlrev_b32 v58, 16, v40\nv_mul_f32 v58, v43, v58\nv_and_b32 v59, 1, v1\nv_lshlrev_b32 v59, 4, v59\nv_lshrrev_b32 v59, v59, {sTag}\nv_and_b32 v59, 0xffff, v59\nv_lshl_or_b32 v57, v59, 16, v59")
        a(f"s_mov_b32 s25, {8*2560}\ns_mov_b32 s26, {16*2560}\ns_mov_b32 s68, 0")
        AR=[88,94,100,106]
        def ald(r):
            for k in range(6): a(f"v_mov_b32 v{r+k}, 0")
            for k,so in enumerate(("0","s25","s26")): a(f"buffer_atomic_or_x2 v[{r+2*k}:{r+2*k+1}], v164, s[20:23], {so} offen sc0 sc1")
        for i in range(y2d):
            ald(AR[i])
            if y2s and i<y2d-1: a(f"s_sleep {y2s}")
        a("L_at_loop:")
        for i in range(y2d):
            r=AR[i]
            a(f"s_waitcnt vmcnt({3*(y2d-1)})")
            a(f"v_perm_b32 v52, v{r+1}, v{r}, s30\nv_perm_b32 v53, v{r+3}, v{r+2}, s31\nv_perm_b32 v54, v{r+5}, v{r+4}, s30\nv_or_b32 v52, v52, v53\nv_xor_b32 v52, v52, v57\nv_xor_b32 v54, v54, v59\nv_or_b32 v52, v52, v54\nv_cmp_ne_u32 vcc, 0, v52")
            a(f"s_cbranch_vccz L_at_ok{i}")
            if y2s: a(f"s_sleep {y2s}")
            ald(r)
        a(f"s_add_u32 s68, s68, 1\ns_cmp_gt_u32 s68, {SPIN}\ns_cbranch_scc0 L_at_loop")
        for i in reversed(range(y2d)):
            r=AR[i]
            a.fence()
            a(f"L_at_ok{i}:\nv_add_f32 v54, v{r}, v{r+2}\nv_add_f32 v55, v{r+1}, v{r+3}\nv_add_f32 v54, v54, v{r+4}\nv_add_f32 v55, v55, v{r+5}")
            if i: a("s_nop 0\ns_branch L_at_done")
        a("L_at_done:")
        stamp(5); cnt(1)
        a("v_permlane32_swap_b32 v54, v55\nv_add_f32 v54, v54, v55")
        a(f"v_add_f32_dpp v55, v54, v54 row_ror:8 {DPPM}\nv_add_f32_dpp v54, v54, v54 row_ror:8 {DPPM}\nv_permlane16_swap_b32 v54, v55\nv_add_f32 v54, v54, v55")
        a("v_add_f32 v54, v54, v58\nv_cvt_pk_bf16_f32 v54, v54, v54\ns_mov_b32 exec_lo, 0xff\ns_mov_b32 exec_hi, 0xff\nglobal_store_short v13, v54, s[58:59]")
        stamp(9)
        a(f"s_cmp_eq_u32 s2, {8*fa}\ns_cbranch_scc0 L_fin")
        a(f"s_mov_b64 exec, 1\nv_mov_b32 v52, s70\nbuffer_store_dword v52, v9, s[20:23], 0 offen sc1")
        a("s_branch L_fin")
        a.fence()
    if fin=="spread":
        a("s_cmp_eq_u32 s24, 0\ns_cbranch_scc1 L_fin\nv_mov_b32 v14, v164\ns_waitcnt vmcnt(0)")
        if not bar:
            a(f"L_fzw:\nds_read_b32 v58, v7 offset:{LZF}\ns_waitcnt lgkmcnt(0)\nv_cmp_gt_f32 vcc, 0, v58")
            spin_tail("L_fzw","L_fzr",1)
    elif fin=="x": a(f"s_cmp_lt_u32 {sSW}, 5\ns_cbranch_scc0 L_fin")
    mark=len(a.lines)
    if zfull: a("v_lshlrev_b32 v58, 16, v40\nv_lshlrev_b32 v59, 16, v165\nv_mul_f32 v58, v43, v58\nv_mul_f32 v59, v43, v59")
    else: a("v_lshlrev_b32 v58, 16, v40\nv_and_b32 v59, 0xffff0000, v40\nv_mul_f32 v58, v43, v58\nv_mul_f32 v59, v43, v59")
    for i in range(y2d):
        for k in range(4): a(f"v_mov_b32 v{RING[i]+k}, 0")
    a("s_mov_b32 exec_lo, 0x00ffffff\ns_mov_b32 exec_hi, 0x00ffffff")
    def y2first(r):
        a(f"s_mov_b64 exec, -1\nv_permlane16_swap_b32 v{r}, v{r+2}\nv_permlane16_swap_b32 v{r+1}, v{r+3}\nv_add_f32 v54, v{r}, v{r+2}\nv_add_f32 v55, v{r+1}, v{r+3}")
    ring("y2",y2d,lambda r:a(f"buffer_load_dwordx4 v[{r}:{r+3}], v14, s[20:23], 0 offen {gp}"),chk1,y2first,sleep=y2s,sleep0=y2s)
    stamp(8 if fin!="spread" else 5)
    cnt(2 if fin!="spread" else 1)
    red16("v_add_f32",[54,55])
    a("v_add_f32 v54, v54, v58\nv_add_f32 v55, v55, v59\nv_cvt_pk_bf16_f32 v54, v54, v55")
    a(f"s_mov_b32 exec_lo, 0x00010001\ns_mov_b32 exec_hi, 0x00010001")
    if zfull: a("global_store_short v13, v54, s[58:59]\nglobal_store_short_d16_hi v13, v54, s[58:59] offset:8")
    else: a("global_store_dword v13, v54, s[58:59]")
    stamp(9)
    if fin=="spread": a("s_cmp_eq_u32 s2, 0\ns_cbranch_scc0 L_fin")
    else: a(f"s_cmp_eq_u32 s2, 240\ns_cbranch_scc0 L_fin\ns_cmp_eq_u32 {sSW}, 0\ns_cbranch_scc0 L_fin")
    a(f"s_mov_b64 exec, 1\nv_mov_b32 v52, s70\nbuffer_store_dword v52, v9, s[20:23], 0 offen sc1")
    a("s_branch L_fin")
    if fin=="atom": del a.lines[mark:]
    if fin=="acc": del a.lines[mark0:]
    a.fence()
    a("L_ctl:")
    if b0mid==1: a("s_barrier   ; B0")
    if cprio: a(f"s_setprio {cprio}")
    ids()
    a(f"s_cmp_eq_u32 {sW}, 3\ns_cbranch_scc1 L_gate")
    S1=64
    a(f"s_mul_i32 s68, {sS}, {80*12288}\ns_mul_i32 s69, {sH}, 384\ns_add_u32 s68, s68, s69\ns_lshl_b32 s69, {sW}, 7\ns_add_u32 s68, s68, s69")
    a(f"s_mul_i32 s71, {sA}, {20*3072}\ns_add_u32 s71, s71, s69\ns_mul_i32 s69, {sG}, 384\ns_add_u32 s71, s71, s69")
    a(f"s_mov_b32 s14, {79*12288+128}\ns_mov_b32 s15, 0x20000\ns_mov_b32 s18, {19*3072+128}\ns_mov_b32 s19, 0x20000\ns_mov_b32 s34, 1280\ns_mov_b32 s35, 0x20000")
    a(f"v_mul_u32_u24 v5, {10*12288}, v2\nv_lshl_add_u32 v5, v3, 4, v5")
    a(f"v_mul_u32_u24 v6, {3*3072}, v2\nv_lshl_add_u32 v6, v3, 4, v6\nv_add_u32 v14, 6144, v6")
    a(f"v_mul_u32_u24 v7, 20, v2\ns_mul_i32 s27, {sS}, 160\nv_add_u32 v7, s27, v7")
    a(f"v_mul_u32_u24 v8, 6, v2\ns_mul_i32 s27, {sA}, 40\nv_add_u32 v8, s27, v8")
    a("s_waitcnt lgkmcnt(0)")
    a(f"s_add_u32 s12, s42, s68\ns_addc_u32 s13, s43, 0\ns_and_b32 s13, s13, 0xffff")
    a(f"s_add_u32 s16, s48, s71\ns_addc_u32 s17, s49, 0\ns_and_b32 s17, s17, 0xffff")
    a(f"s_mov_b32 s32, s36\ns_and_b32 s33, s37, 0xffff")
    for t in range(10):
        a(f"s_mov_b32 s71, {t*12288}\nbuffer_load_dwordx4 v[{S1+4*t}:{S1+4*t+3}], v5, s[12:15], s71 offen nt")
        if t==cpre-1:
            if not b0early:
                wssrd()
                a("s_barrier   ; B0")
    a(f"buffer_load_dwordx4 v[{S1+40}:{S1+43}], v6, s[16:19], 0 offen nt")
    a(f"buffer_load_dwordx4 v[{S1+44}:{S1+47}], v6, s[16:19], 0 offen offset:3072 nt")
    a(f"buffer_load_dwordx4 v[{S1+48}:{S1+51}], v14, s[16:19], 0 offen nt")
    a(f"buffer_load_dwordx4 v[{S1+52}:{S1+55}], v7, s[32:35], 0 offen")
    a(f"buffer_load_dword v{S1+56}, v7, s[32:35], 0 offen offset:16")
    for t in range(3): a(f"buffer_load_ushort v{S1+60+t}, v8, s[32:35], 0 offen offset:{2*t}")
    if b0early: wssrd()
    masks()
    a(f"s_lshl_b32 s68, {sH}, 3\ns_add_u32 s68, s68, {sS}\ns_mul_i32 s68, s68, 768\ns_add_u32 s68, s68, {QP}")
    a(f"s_mul_i32 s69, {sG}, {32*768}\ns_lshl_b32 s27, {sA}, 4\ns_add_u32 s69, s69, s27\ns_add_u32 s69, s69, {HP}")
    a(f"v_and_b32 v10, 16, v1\nv_lshl_add_u32 v10, v3, 5, v10\ns_lshl_b32 s27, {sW}, 8\nv_add_u32 v10, s27, v10")
    a(f"v_add_u32 v9, s68, v10\nv_lshl_add_u32 v10, v10, 5, s69\nv_cmp_gt_u32 vcc, 32, v1\nv_cndmask_b32 v9, v10, v9, vcc\ns_mov_b32 s68, s27")
    a(f"v_lshrrev_b32 v10, 4, v1\nv_mul_u32_u24 v11, 768, v10\nv_and_b32 v12, 15, v1\nv_lshl_add_u32 v11, v12, 4, v11")
    a(f"s_mul_i32 s69, {sH}, {8*768}\ns_add_u32 s69, s69, s68\ns_add_u32 s69, s69, {QP}\nv_add_u32 v11, s69, v11")
    a(f"v_and_b32 v13, 1, v10\nv_lshlrev_b32 v13, 1, v13\nv_lshrrev_b32 v14, 1, v10\nv_add_u32 v13, v13, v14\nv_lshl_add_u32 v13, v12, 2, v13\nv_lshlrev_b32 v13, 1, v13\ns_lshl_b32 s69, {sW}, 7\nv_add_u32 v13, s69, v13")
    if gep:
        a(f"v_mov_b32 v6, 0\ns_mov_b32 s68, 0\nL_tgw:\nds_read_b64 v[52:53], v6 offset:{LTG}\ns_waitcnt lgkmcnt(0)\nv_cmp_gt_f32 vcc, 0, v52")
        spin_tail("L_tgw","L_tgok",1)
        tagcalc(False,"v53")
    else: tagcalc()
    a("s_mov_b32 s68, 0x01000100\ns_mov_b32 s69, 0x03020302")
    a(f"s_waitcnt vmcnt(0)")
    for t in range(13):
        A=52+4*(t&1)
        if t<10: a(f"v_perm_b32 v60, v{S1+52+t//2}, v{S1+52+t//2}, s{68+(t&1)}")
        else: a(f"v_perm_b32 v60, v{S1+60+t-10}, v{S1+60+t-10}, s68")
        for w in range(4): a(f"v_and_b32 v{A+w}, v60, v{16+w}")
        Dr=32 if t<10 else 36
        C="0" if t in (0,10) else f"v[{Dr}:{Dr+3}]"
        a(f"v_mfma_f32_16x16x32_bf16 v[{Dr}:{Dr+3}], v[{A}:{A+3}], v[{S1+4*t}:{S1+4*t+3}], {C}")
    for r in range(4): a(f"v_permlane32_swap_b32 v{32+r}, v{36+r}")
    for r in range(4): a(f"v_add_f32_dpp v{32+r}, v{36+r}, v{32+r} row_ror:8 {DPPM}")
    tag4(32)
    a("s_mov_b32 exec_lo, 0x00ff00ff\ns_mov_b32 exec_hi, 0x00ff00ff")
    a("buffer_store_dwordx4 v[32:35], v9, s[20:23], 0 offen")
    a("s_mov_b64 exec, -1")
    stamp(2)
    def restore(tagn):
        a(f"v_readfirstlane_b32 {sMode}, v63\ns_cmp_eq_u32 {sMode}, 1.0\ns_cbranch_scc0 L_nr{tagn}\ns_cmp_eq_u32 s26, 0\ns_cbranch_scc0 L_nr{tagn}")
        a("s_mov_b32 s26, 1\ns_mov_b32 exec_lo, 0x00ff00ff\ns_mov_b32 exec_hi, 0x00ff00ff\nbuffer_store_dwordx4 v[32:35], v9, s[20:23], 0 offen sc1\ns_mov_b64 exec, -1")
        a(f"L_nr{tagn}:")
    a(f"v_mov_b32 v6, 0\ns_mov_b32 s26, 0\ns_mov_b32 s68, 0\ns_sleep 8")
    a("L_qpoll:")
    a(f"buffer_load_dwordx4 v[52:55], v11, s[20:23], 0 offen {lp}")
    a(f"buffer_load_dwordx4 v[56:59], v11, s[20:23], 0 offen offset:3072 {lp}")
    a(f"s_waitcnt vmcnt(0)\nds_read_b32 v63, v6 offset:{LFQ+12}")
    chk4(52,60,True,62); chk4(56,60,False,62)
    a("s_waitcnt lgkmcnt(0)")
    restore(1)
    a("v_cmp_ne_u32 vcc, 0, v62")
    spin_tail("L_qpoll","L_qok")
    cnt(0)
    for r in range(4): a(f"v_add_f32 v{52+r}, v{52+r}, v{56+r}")
    a("v_permlane32_swap_b32 v52, v53\nv_permlane32_swap_b32 v54, v55\nv_add_f32 v52, v52, v53\nv_add_f32 v54, v54, v55")
    a("v_permlane16_swap_b32 v52, v54\nv_add_f32 v52, v52, v54\nv_cvt_pk_bf16_f32 v52, v52, v52")
    a(f"ds_write_b16 v13, v52 offset:{LQ}")
    a(f"s_lshl_b32 s68, {sW}, 2\nv_mov_b32 v5, s68\nds_write_b32 v5, v6 offset:{LFQ}")
    stamp(3)
    a("s_mov_b32 s68, 0\nL_mw:")
    a(f"ds_read_b32 v63, v6 offset:{LFQ+12}\ns_waitcnt lgkmcnt(0)\nv_cmp_gt_f32 vcc, 0, v63")
    spin_tail("L_mw","L_mok",1)
    restore(2)
    a("s_branch L_ffn")
    a.fence()
    a("L_gate:")
    G=64
    if not b0early: a(f"v_lshlrev_b32 v9, 2, v1\nv_mov_b32 v52, -1.0\nds_write_b32 v9, v52 offset:{LFQ}")
    a("s_getreg_b32 s25, hwreg(HW_REG_XCC_ID)\ns_and_b32 s25, s25, 15")
    a("s_waitcnt lgkmcnt(0)")
    wssrd(True)
    if not b0early: a("s_barrier   ; B0")
    a("v_mul_u32_u24 v7, 20, v1")
    a(f"s_lshl_b32 s27, {sG}, 7\ns_add_u32 s27, s27, {XT}\nv_and_b32 v11, 31, v1\nv_lshl_add_u32 v8, v11, 2, s27\ns_lshl_b32 s26, {sA}, 2\ns_add_u32 s26, s26, s27\nv_mov_b32 v4, s26")
    def accinit():
        a("s_cmp_eq_u32 s2, 255\ns_cbranch_scc0 L_noinit")
        a(f"v_mov_b32 v56, 0\nv_mov_b32 v57, 0\nv_mov_b32 v58, 0\nv_mov_b32 v59, 0\nv_lshlrev_b32 v53, 4, v1\nv_add_u32 v53, {Y2}, v53")
        for k in range(80*(1<<ast)//1024):
            a(f"s_mov_b32 s71, {k*1024}\nbuffer_store_dwordx4 v[56:59], v53, s[20:23], s71 offen sc1")
        a("s_waitcnt vmcnt(0)")
        if gep: a("v_mov_b32 v53, 1\ns_mov_b64 exec, 1\nglobal_store_dword v56, v53, s[60:61] sc1\ns_mov_b64 exec, -1")
        a("L_noinit:")
    if fin=="acc" and not gep:
        a(f"v_mov_b32 v53, {XT+7*128+31*4}\nv_cmp_gt_u32 vcc, 32, v1\nv_cndmask_b32 v8, v53, v8, vcc")
        accinit()
    tagcalc()
    if gep: a(f"v_mov_b32 v54, 0\nv_mov_b32 v55, s70\nds_write_b64 v54, v[54:55] offset:{LTG}")
    a(f"s_and_b32 s27, {sTag}, 0xfffffff0\ns_or_b32 s27, s27, s25\nv_mov_b32 v52, s27")
    a("s_mov_b64 exec, 1\nbuffer_store_dword v52, v4, s[20:23], 0 offen sc1\ns_mov_b64 exec, -1")
    if gep: accinit()
    a(f"global_load_dwordx4 v[{G}:{G+3}], v7, s[36:37]\nglobal_load_dword v{G+4}, v7, s[36:37] offset:16")
    a(f"global_load_dwordx4 v[{G+8}:{G+11}], v7, s[56:57]\nglobal_load_dword v{G+12}, v7, s[56:57] offset:16")
    a("v_mov_b32 v6, 0")
    def xpoll():
        a("s_mov_b32 s68, 0")
        if not latehs: a("s_waitcnt vmcnt(4)")
        a("L_xpoll:")
        if gep:
            a("buffer_load_dword v53, v8, s[20:23], 0 offen sc1\nglobal_load_dword v54, v6, s[60:61] sc1\ns_waitcnt vmcnt(0)")
            a("v_xor_b32 v53, s27, v53\nv_cmp_eq_u32 s[68:69], 0, v54\nv_cmp_lt_u32 vcc, 15, v53\ns_or_b64 vcc, vcc, s[68:69]".replace("s[68:69]","s[4:5]"))
        else:
            a("buffer_load_dword v53, v8, s[20:23], 0 offen sc1\ns_waitcnt vmcnt(0)")
            a("v_xor_b32 v53, s27, v53\nv_cmp_lt_u32 vcc, 15, v53")
        spin_tail("L_xpoll","L_xok",16 if latehs else 0)
        a("v_cmp_ne_u32 vcc, 0, v53")
        if forcesafe: a(f"s_mov_b32 {sMode}, 1.0")
        else: a(f"s_cmp_lg_u32 vcc_lo, 0\ns_cselect_b32 {sMode}, 1.0, 0")
        a(f"v_mov_b32 v53, {sMode}\nds_write_b32 v6, v53 offset:{LFQ+12}")
        if gep:
            a(f"s_cmp_eq_u32 {sA}, 0\ns_cbranch_scc0 L_noep\ns_lshl_b32 s71, {sG}, 7\nv_mov_b32 v54, s70\ns_mov_b64 exec, 1\nbuffer_store_dword v54, v6, s[20:23], s71 offen sc1\ns_mov_b64 exec, -1\nL_noep:")
        stamp(2)
        cnt(0)
    if not latehs: xpoll()
    else: a("s_waitcnt vmcnt(0)")
    a("v_mov_b32 v52, 0")
    for k in range(5):
        a(f"v_lshlrev_b32 v53, 16, v{G+k}\nv_and_b32 v54, 0xffff0000, v{G+k}\nv_lshlrev_b32 v55, 16, v{G+8+k}\nv_and_b32 v56, 0xffff0000, v{G+8+k}")
        a("v_mul_f32 v53, v53, v55\nv_mul_f32 v54, v54, v56\nv_cvt_pk_bf16_f32 v53, v53, v54\nv_lshlrev_b32 v54, 16, v53\nv_and_b32 v53, 0xffff0000, v53\nv_add_f32 v52, v52, v54\nv_add_f32 v52, v52, v53")
    red16("v_add_f32",[52]); redrows("v_add_f32",52,53)
    a("v_cvt_pk_bf16_f32 v52, v52, v52\nv_and_b32 v52, 0xffff0000, v52")
    a(f"v_mul_f32 v52, {f32hex(-math.log2(math.e))}, v52\nv_exp_f32 v52, v52\nv_add_f32 v52, 1.0, v52\nv_rcp_f32 v52, v52")
    a("v_cvt_pk_bf16_f32 v52, v52, v52\nv_and_b32 v52, 0xffff0000, v52\nv_sub_f32 v53, 1.0, v52\nv_cvt_pk_bf16_f32 v53, v53, v53\nv_and_b32 v53, 0xffff0000, v53")
    a(f"ds_write_b64 v6, v[52:53] offset:{LG}")
    if latehs:
        a("s_mov_b32 s68, 0\nL_gq0:")
        a(f"ds_read_b96 v[52:54], v6 offset:{LFQ}\ns_waitcnt lgkmcnt(0)\nv_min3_f32 v52, v52, v53, v54\nv_cmp_gt_f32 vcc, 0, v52")
        a(f"s_cbranch_vccz L_gq0ok\ns_sleep 2\ns_add_u32 s68, s68, 1\ns_cmp_gt_u32 s68, {hsb}\ns_cbranch_scc0 L_gq0\nL_gq0ok:")
        xpoll()
    a("s_mov_b32 s68, 0\nL_gq:")
    a(f"ds_read_b96 v[52:54], v6 offset:{LFQ}\ns_waitcnt lgkmcnt(0)\nv_min3_f32 v52, v52, v53, v54\nv_cmp_gt_f32 vcc, 0, v52")
    spin_tail("L_gq","L_gqok",2)
    stamp(3)
    a("L_ffn:")
    a.fence()
    a(f"s_lshl_b32 s68, {sRG}, 2\ns_add_u32 s68, s68, {sW}")
    a(f"s_lshl_b32 s69, s68, 11\ns_mul_i32 s27, {sG}, {32*768}\ns_add_u32 s69, s69, s27\ns_add_u32 s69, s69, {HP}")
    a("v_lshl_add_u32 v11, v1, 4, s69")
    a(f"s_lshl_b32 s69, s68, 5\ns_mul_i32 s27, {sG}, 384\ns_add_u32 s69, s69, s27\nv_lshrrev_b32 v10, 4, v1\nv_lshl_add_u32 v12, v10, 2, s69")
    a("global_load_dword v44, v12, s[50:51]\nglobal_load_dword v45, v12, s[50:51] offset:16")
    a(f"s_lshl_b32 s69, {sW}, 6\nv_lshl_add_u32 v13, v10, 3, s69")
    a(f"s_mov_b32 s68, 0")
    a("L_hpoll:")
    a(f"buffer_load_dwordx4 v[52:55], v11, s[20:23], 0 offen {lp}\nbuffer_load_dwordx4 v[56:59], v11, s[20:23], 0 offen offset:1024 {lp}\ns_waitcnt vmcnt(0)")
    chk4(52,60,True,62); chk4(56,60,False,62)
    a("v_cmp_ne_u32 vcc, 0, v62")
    spin_tail("L_hpoll","L_hok",8)
    cnt(1)
    for b in (52,56):
        a(f"v_permlane16_swap_b32 v{b}, v{b+2}\nv_permlane16_swap_b32 v{b+1}, v{b+3}\nv_add_f32 v{b}, v{b}, v{b+2}\nv_add_f32 v{b+1}, v{b+1}, v{b+3}")
    red16("v_add_f32",[52,53,56,57])
    c1=-2*math.sqrt(2/math.pi)*math.log2(math.e)
    for b,bb,o in ((52,44,0),(56,45,32)):
        a(f"v_cvt_pk_bf16_f32 v60, v{b}, v{b+1}\nv_lshlrev_b32 v{b}, 16, v60\nv_and_b32 v{b+1}, 0xffff0000, v60")
        a(f"v_lshlrev_b32 v60, 16, v{bb}\nv_and_b32 v61, 0xffff0000, v{bb}\nv_add_f32 v{b}, v{b}, v60\nv_add_f32 v{b+1}, v{b+1}, v61")
        a(f"v_cvt_pk_bf16_f32 v60, v{b}, v{b+1}\nv_lshlrev_b32 v{b}, 16, v60\nv_and_b32 v{b+1}, 0xffff0000, v60")
        for x,t in ((b,60),(b+1,61)):
            a(f"v_mul_f32 v{t}, v{x}, v{x}\nv_mul_f32 v{t}, {f32hex(0.044715)}, v{t}\nv_fma_f32 v{t}, v{t}, v{x}, v{x}\nv_mul_f32 v{t}, {f32hex(c1)}, v{t}")
            a(f"v_exp_f32 v{t}, v{t}\nv_add_f32 v{t}, 1.0, v{t}\nv_rcp_f32 v{t}, v{t}\nv_mul_f32 v{x}, v{x}, v{t}\nv_cvt_pk_bf16_f32 v{x}, v{x}, v{x}")
        a(f"ds_write_b64 v13, v[{b}:{b+1}] offset:{LHV+o}")
    a(f"s_lshl_b32 s68, {sW}, 2\nv_mov_b32 v5, s68\nds_write_b32 v5, v6 offset:{LCD}")
    stamp(4)
    if iw is not None:
        a(f"s_cmp_eq_u32 {sW}, {iw}\ns_cbranch_scc0 L_noiw")
        for r in (5,7,10,12,13,14,36,164): a(f"v_mov_b32 v{r}, 0")
        a(f"s_mov_b32 s22, 0\ns_mov_b32 {sSW}, 0\ns_mov_b64 s[46:47], 0\ns_mov_b64 s[36:37], 0\ns_mov_b64 s[48:49], 0\ns_mov_b64 s[32:33], 0\ns_waitcnt lgkmcnt(0)\ns_branch L_stail\nL_noiw:")
    a(f"s_cmp_eq_u32 {sW}, 3\ns_cbranch_scc0 L_fin")
    a(f"s_lshl_b32 s68, {sH}, 3\ns_add_u32 s68, s68, {sS}\ns_lshl_b32 s68, s68, 4\ns_add_u32 s68, s68, {ML}\nv_mov_b32 v5, s68")
    a(f"s_lshl_b32 s68, {sH}, 7\ns_add_u32 s68, s68, {ML}\nv_lshl_add_u32 v8, v3, 4, s68\nv_lshlrev_b32 v7, 3, v3")
    a(f"s_mov_b32 s68, 0")
    a("L_lml:")
    a(f"ds_read_b128 v[48:51], v6 offset:{LCD}\nds_read_b64 v[54:55], v7 offset:{LML}\ns_waitcnt lgkmcnt(0)\nv_min3_f32 v48, v48, v49, v50\nv_min_f32 v48, v48, v55\nv_cmp_gt_f32 vcc, 0, v48")
    spin_tail("L_lml","L_lmlok",2)
    a("v_mov_b32 v56, v54")
    red8("v_max_f32",[56])
    a("v_sub_f32 v57, v54, v56\nv_exp_f32 v57, v57\nv_mul_f32 v57, v57, v55")
    red8("v_add_f32",[57])
    a(f"v_mov_b32 v59, {sTag}\ns_mov_b64 exec, 1")
    lstore("buffer_store_dwordx4 v[56:59], v5, s[20:23], 0 offen")
    a("s_mov_b64 exec, -1")
    stamp(5)
    if mlfast: a("s_mov_b32 s68, 0\ns_sleep 8\ns_mov_b64 exec, 0xff")
    else: a("s_mov_b32 s68, 0\ns_waitcnt vmcnt(0)\ns_mov_b64 exec, 0xff")
    a("L_mlpoll:")
    a(f"buffer_load_dwordx4 v[56:59], v8, s[20:23], 0 offen {lp}\ns_waitcnt vmcnt(0)\nv_cmp_ne_u32 vcc, {sTag}, v59")
    spin_tail("L_mlpoll","L_mlok")
    cnt(2)
    a("v_mov_b32 v58, v56")
    red8("v_max_f32",[58])
    a("v_sub_f32 v56, v56, v58\nv_exp_f32 v56, v56\nv_mul_f32 v57, v56, v57")
    red8("v_add_f32",[57])
    if gF: a(f"ds_read_b32 v50, v6 offset:{LG}")
    a("v_rcp_f32 v57, v57\nv_sub_f32 v54, v54, v58\nv_exp_f32 v54, v54\nv_mul_f32 v54, v54, v57")
    if gF: a("s_waitcnt lgkmcnt(0)\nv_mul_f32 v54, v54, v50")
    a(f"ds_write_b32 v7, v54 offset:{LFF+4}\ns_waitcnt lgkmcnt(0)")
    stamp(6)
    a("L_fin:")
    if diag:
        a("s_mov_b64 exec, -1")
        a("s_waitcnt vmcnt(0)")
        stamp(1)
        a("s_getreg_b32 s99, hwreg(HW_REG_XCC_ID)")
        a("s_waitcnt lgkmcnt(0)")
        if bar: a(f"s_cmp_lt_u32 {sW}, 4\ns_cbranch_scc1 L_dgo")
        a("L_dw:\ns_sleep 32\ns_memrealtime s[4:5]\ns_waitcnt lgkmcnt(0)\ns_sub_u32 s4, s4, s76\ns_cmp_lt_u32 s4, 3000\ns_cbranch_scc1 L_dw\nL_dgo:")
        a(f"s_add_u32 s62, s62, {1610612736-(16<<20)}\ns_addc_u32 s63, s63, 0")
        a(f"s_mul_i32 s68, s2, 12\ns_add_u32 s68, s68, {sW}\ns_mul_i32 s68, s68, 96\nv_mov_b32 v4, s68")
        for i in range(24): a(f"v_mov_b32 v{64+i}, s{76+i}")
        a("s_mov_b64 exec, 1")
        for i in range(6): a(f"global_store_dwordx4 v4, v[{64+4*i}:{67+4*i}], s[62:63] offset:{16*i}")
    a("L_end:\ns_endpgm")
    for x in ool:
        a.fence(); a(x)
    a.raw(f""".section .rodata,"a"
.p2align 6
.amdhsa_kernel {NAME}
  .amdhsa_next_free_vgpr 168
  .amdhsa_next_free_sgpr 102
  .amdhsa_accum_offset 168
  .amdhsa_group_segment_fixed_size 0
  .amdhsa_kernarg_size 112
  .amdhsa_user_sgpr_count 2
  .amdhsa_user_sgpr_kernarg_segment_ptr 1
  .amdhsa_system_sgpr_workgroup_id_x 1
.end_amdhsa_kernel""")
    return a.text()
```

```python
import gen5,re
from build import build
g=dict(bar=True,pk=True,D=3,Dend=5,nend=47,wbar=47,fin="acc",b0early=True,D0=5,nset=10,gF=True,ffall=True,gep=True,foldF=True)
t=gen5.gen(**g)
def w(n,s): open(n+".s","w").write(s); build(n+".s")
w("a",t)
k="    v_pk_mul_f32 v[20:21], v[20:21]"
w("b",t.replace(k,"    s_nop 15\n    s_nop 15\n"+k))
def rp(m):
    a=int(m.group(1)); return f"    v_mul_f32 v{a}, v59, v{a}\n    v_mul_f32 v{a+1}, v59, v{a+1}"
w("c",re.sub(r"    v_pk_mul_f32 v\[(\d+):\d+\], .*",rp,t))
k2="    v_pk_mul_f32 v[30:31], v[30:31], v[58:59] op_sel:[0,1] op_sel_hi:[1,1]\n"
w("d",t.replace(k2,k2+"    s_nop 15\n"))
k3="    v_mul_f32 v51, v59, v51\n"
w("e",t.replace(k3,"    s_nop 15\n    s_nop 15\n"+k3))
w("f",t.replace(k,"    s_nop 15\n    s_nop 15\n"+k).replace(k2,k2+"    s_nop 15\n    s_nop 15\n"))
w("g",t.replace(k3,k3+"    v_mov_b32 v58, v59\n").replace("op_sel:[0,1] op_sel_hi:[1,1]",""))
w("h",t.replace(k3,k3+"    v_mov_b32 v58, 0\n"))
w("np",gen5.gen(**dict(g,foldF=False,pk=False)))
```

```python
import sys, math
from asmlib import Asm, f32hex
NAME="gated_mix__sliding_block_cached__dense_activation_gelu__decode_kernel"
HS=12582912
EP=0x0; XT=0x800; QP=0x1000; HP=0x40000; ML=0x80000; ACC=0x90000; WS_USED=0x100000
LQ=0; LFQ=384; LCD=400; LTG=416; LML=448; LFF=512; LG=640; LHV=768; LO=1024; SLOT=1568; LZ=LO+8*SLOT+64; ZS=640; LDS_SIZE=LZ+8*ZS
SPIN=200000
DPPM="row_mask:0xf bank_mask:0xf"

HEAD='''; ---------------------------------------------------------------------------------------------
; ---------------------------------------------------------------------------------------------'''

def gen(diag=False, D=3, D0=5, Dend=5, nend=47, nq=21, nm=40, nset=10, ntail=12, h1d=3, h1s=2, tile="A",
        forcesafe=False, shuffle=False, hsb=60, st3=None, lp="sc1 nt", cprio=2, wbar=47, dfun=None, xplain=True, xtry=3, eplain=False, init="c3", initwg=255, ast=7, cD=None):
    a=Asm()
    uid=[0]; ool=[]
    TB = tile=="B"
    def stamp(i):
        if diag: a(f"s_memrealtime s[{76+2*i}:{77+2*i}]")
    def cnt(i):
        if diag: a(f"s_mov_b32 s{96+i}, s68")
    a.raw(f"; @launch grid=(256,1,1) block=(768,1,1) lds={LDS_SIZE}")
    a.raw(HEAD)
    a.raw('.amdgcn_target "amdgcn-amd-amdhsa--gfx950"\n.text')
    a.raw(f".globl {NAME}\n.p2align 8\n.type {NAME},@function\n{NAME}:")
    a("s_cmp_ge_u32 s2, 256\ns_cbranch_scc1 L_end")
    if shuffle: a("s_and_b32 s3, s2, 7\ns_lshl_b32 s3, s3, 5\ns_lshr_b32 s2, s2, 3\ns_or_b32 s2, s2, s3")
    sW="s3"; sH="s64"; sS="s65"; sTag="s66"; sSW="s67"; sG="s28"; sA="s29"; sMode="s100"; sRG="s101"
    a(f"v_lshrrev_b32 v2, 6, v0\nv_and_b32 v1, 63, v0\nv_readfirstlane_b32 {sW}, v2")
    a(f"s_cmp_eq_u32 {sW}, 1\ns_cbranch_scc0 L_noli")
    a(f"; wave 1 clears the LDS flags\nv_lshlrev_b32 v9, 2, v1\nv_mov_b32 v52, -1.0\nds_write_b32 v9, v52 offset:{LFQ}\ns_waitcnt lgkmcnt(0)\nL_noli:")
    a("s_load_dwordx16 s[36:51], s[0:1], 0")
    a("s_load_dwordx8 s[52:59], s[0:1], 64")
    a("s_load_dwordx4 s[60:63], s[0:1], 96")
    stamp(0)
    if diag:
        for i in range(1,12): a(f"s_mov_b64 s[{76+2*i}:{77+2*i}], 0")
    a(f"s_and_b32 {sH}, s2, 31\ns_lshr_b32 {sS}, s2, 5")
    a("v_lshrrev_b32 v2, 3, v1\nv_and_b32 v3, 7, v1")
    a("s_barrier")
    K0=64
    def ids():
        if TB: a(f"s_and_b32 {sG}, s2, 7\ns_lshr_b32 {sA}, s2, 3\ns_mul_i32 {sRG}, {sA}, 52\ns_lshr_b32 {sRG}, {sRG}, 8\ns_min_u32 {sRG}, {sRG}, 5")
        else:  a(f"s_and_b32 {sG}, s2, 7\ns_lshr_b32 {sA}, s2, 3\ns_mul_i32 {sRG}, {sA}, 26\ns_lshr_b32 {sRG}, {sRG}, 8\ns_min_u32 {sRG}, {sRG}, 2")
    def masks():
        a("; v16..v19: one-hot bf16 position masks for the MFMA coefficient operand")
        a("v_and_b32 v5, 1, v1\nv_lshlrev_b32 v5, 4, v5\nv_mov_b32 v6, 0xffff\nv_lshlrev_b32 v6, v5, v6\nv_lshrrev_b32 v5, 1, v3")
        for w in range(4):
            a(f"v_cmp_eq_u32 vcc, {w}, v5\nv_cndmask_b32 v{16+w}, 0, v6, vcc")
        a("v_mov_b32 v15, 0xff")
    def wssrd():
        a(f"s_mov_b32 s20, s62\ns_and_b32 s21, s63, 0xffff\ns_mov_b32 s22, {WS_USED}\ns_mov_b32 s23, 0x20000")
        a("s_mov_b32 s30, 0x0c0c0400\ns_mov_b32 s31, 0x04000c0c")
    def tagbytes(phase2=False):
        if phase2: a(f"s_xor_b32 {sTag}, s70, 0x80808080")
        else: a(f"s_mov_b32 {sTag}, s70")
        a(f"s_lshr_b32 s73, {sTag}, 8\ns_lshr_b32 s74, {sTag}, 16\ns_lshr_b32 s75, {sTag}, 24\ns_mov_b32 s72, {sTag}")
    def tag4(r):
        for k in range(4): a(f"v_bfi_b32 v{r+k}, v15, s{72+k}, v{r+k}")
    def chk4(r,t0,first,accreg):
        a(f"v_perm_b32 v{t0}, v{r+1}, v{r}, s30\nv_perm_b32 v{t0+1}, v{r+3}, v{r+2}, s31")
        a(f"v_or_b32 v{t0}, v{t0}, v{t0+1}")
        if first: a(f"v_xor_b32 v{accreg}, {sTag}, v{t0}")
        else: a(f"v_xor_b32 v{t0}, {sTag}, v{t0}\nv_or_b32 v{accreg}, v{accreg}, v{t0}")
    M8=("quad_perm:[1,0,3,2]","quad_perm:[2,3,0,1]","row_half_mirror")
    def red8(op,r,mods=M8):
        for mod in mods:
            for x in r: a(f"{op}_dpp v{x}, v{x}, v{x} {mod} {DPPM}")
    def red16(op,r): red8(op,r,M8+("row_mirror",))
    def redrows(op,x,t):
        a(f"v_mov_b32 v{t}, v{x}\nv_permlane16_swap_b32 v{x}, v{t}\n{op} v{x}, v{x}, v{t}")
        a(f"v_mov_b32 v{t}, v{x}\nv_permlane32_swap_b32 v{x}, v{t}\n{op} v{x}, v{x}, v{t}")
    def spin_tail(loop, ok, sleep=0, bound=SPIN):
        a(f"s_cbranch_vccz {ok}")
        if sleep: a(f"s_sleep {sleep}")
        a(f"s_add_u32 s68, s68, 1\ns_cmp_gt_u32 s68, {bound}\ns_cbranch_scc0 {loop}")
        a(f"{ok}:")
    def lstore(txt):
        uid[0]+=1; u=uid[0]
        a(f"s_cmp_eq_u32 {sMode}, 0\ns_cbranch_scc0 L_sf{u}\n{txt}\nL_sd{u}:")
        ool.append(f"L_sf{u}:\n{txt} sc1\ns_branch L_sd{u}")

    def accinit(late=False):
        a(f"s_cmp_eq_u32 s2, {initwg}\ns_cbranch_scc0 L_noinit")
        a(f"v_mov_b32 v56, 0\nv_mov_b32 v57, 0\nv_mov_b32 v58, 0\nv_mov_b32 v59, 0\nv_lshlrev_b32 v53, 4, v1\nv_add_u32 v53, {ACC}, v53\ns_waitcnt lgkmcnt(0)")
        for k in range((80<<ast)//1024):
            if k and k%4==0: a("v_add_u32 v53, 4096, v53")
            a(f"global_store_dwordx4 v53, v[56:59], s[62:63] offset:{(k%4)*1024} sc1")
        a("s_waitcnt vmcnt(0)")
        a("v_mov_b32 v53, 1\ns_mov_b64 exec, 1\nglobal_store_dword v56, v53, s[60:61] sc1\ns_mov_b64 exec, -1")
        a("L_noinit:")
    a(f"s_cmp_lt_u32 {sW}, 4\ns_cbranch_scc1 L_ctl")
    a(f"s_sub_u32 {sSW}, {sW}, 4")
    a("v_mul_u32_u24 v4, 384, v2\nv_lshl_add_u32 v4, v3, 4, v4")
    a(f"s_lshl_b32 s68, {sSW}, 3\ns_add_u32 s68, s68, {sS}\ns_mul_i32 s68, s68, 3072")
    a(f"s_mul_i32 s69, {sH}, {HS}\ns_add_u32 s69, s69, s68\ns_add_u32 s69, s69, {28672*384}")
    a(f"s_mov_b32 s6, {7*196608+3072}\ns_mov_b32 s7, 0x20000\ns_mov_b32 s10, {7*196608+3072}\ns_mov_b32 s11, 0x20000")
    a("s_waitcnt lgkmcnt(0)")
    a("s_add_u32 s4, s38, s69\ns_addc_u32 s5, s39, 0\ns_and_b32 s5, s5, 0xffff")
    N=53
    hooks={n:[] for n in range(N)}
    WR=64
    def waitn(n):
        if n<D0: return None
        d=D if n<nend else min(Dend, D+(n-nend+1))
        if dfun and n<nend: d=eval(dfun)
        if n==N-1 and n-d>47: return None
        return d-1
    def ready(k):
        for n in range(N):
            w=waitn(n)
            if w is not None and n-w-1>=k: return n
        return 99
    def setup():
        a("; ---- per-wave constants")
        a("s_add_u32 s8, s40, s69\ns_addc_u32 s9, s41, 0\ns_and_b32 s9, s9, 0xffff")
        ids(); wssrd(); masks()
        a(f"v_and_b32 v6, 16, v1\nv_lshl_add_u32 v6, v3, 5, v6\nv_lshrrev_b32 v7, 5, v1")
        a(f"v_mul_u32_u24 v5, 768, v7\nv_add_u32 v5, v5, v6\ns_mul_i32 s68, {sSW}, {SLOT}\nv_add_u32 v5, s68, v5")
        if TB: a(f"v_and_b32 v12, 15, v1\nv_and_b32 v6, 16, v1\nv_lshl_add_u32 v12, v12, 5, v6\ns_mul_i32 s68, {sSW}, {ZS}\nv_add_u32 v12, s68, v12")
        else:  a(f"v_lshl_add_u32 v12, v7, 8, v6\ns_mul_i32 s68, {sSW}, {ZS}\nv_add_u32 v12, s68, v12")
        a(f"v_mul_u32_u24 v6, {SLOT}, v3\nv_lshl_add_u32 v6, v2, 4, v6\ns_mul_i32 s68, {sSW}, 96\nv_add_u32 v6, s68, v6")
        a(f"v_mul_u32_u24 v36, {ZS}, v2\nv_lshl_add_u32 v36, v3, 4, v36\ns_and_b32 s68, {sSW}, {3 if TB else 1}\ns_lshl_b32 s68, s68, 7\nv_add_u32 v36, s68, v36")
        a(f"v_lshlrev_b32 v7, 3, v3\ns_lshl_b32 s68, {sSW}, 3\nv_mov_b32 v8, s68\nv_mov_b32 v9, 0")
        a(f"s_lshl_b32 s68, {sH}, 3\ns_add_u32 s68, s68, {sSW}\ns_mul_i32 s68, s68, 768\ns_lshl_b32 s69, {sS}, 4\ns_add_u32 s68, s68, s69\ns_add_u32 s68, s68, {QP}\nv_lshl_add_u32 v10, v2, 7, s68")
        a("v_lshlrev_b32 v11, 4, v3\ns_mov_b32 s32, 0x00ff00ff\ns_mov_b32 s33, 0x00ff00ff")
        a("s_mov_b32 s46, 0x00ff00ff\ns_mov_b32 s47, 0xff00ff00\ns_mov_b32 s48, 0x01010101\ns_mov_b32 s49, 0x00000101")
    hooks[nset].append(setup)
    def tailsetup():
        a("; ---- output-projection tile of this wave")
        per,rows,cw,frows = (12,16,256,4) if TB else (6,32,128,8)
        a(f"s_lshl_b32 s68, {sRG}, 3\ns_add_u32 s68, s68, {sSW}\ns_mul_i32 s69, s68, 43\ns_lshr_b32 s69, s69, {9 if TB else 8}")
        a(f"s_mul_i32 s25, s69, {per}\ns_sub_u32 s25, s68, s25\ns_lshl_b32 s69, s69, 3\ns_add_u32 s69, s69, {sG}")
        a(f"s_mul_i32 s26, {sRG}, {5 if TB else 10}\ns_sub_u32 s26, {sA}, s26\ns_mul_i32 s24, s26, {cw}")
        a(f"s_mul_i32 s27, s69, {per}\ns_add_u32 s27, s27, s25\ns_mul_i32 s27, s27, {rows*1280}\ns_add_u32 s27, s27, s24")
        a(f"s_add_u32 s12, s44, s27\ns_addc_u32 s13, s45, 0\ns_and_b32 s13, s13, 0xffff\ns_cmp_lt_u32 {sA}, 30\ns_cselect_b32 s14, {(rows-1)*1280+cw}, 0\ns_cselect_b32 s18, {(frows-1)*1280+cw}, 0\ns_cselect_b32 s26, s24, 0\ns_mov_b32 s15, 0x20000\ns_mov_b32 s19, 0x20000")
        a(f"s_mul_i32 s27, {sG}, {192//frows}\ns_add_u32 s27, s27, s68\ns_mul_i32 s27, s27, {frows*1280}\ns_add_u32 s27, s27, s24")
        a(f"s_add_u32 s16, s52, s27\ns_addc_u32 s17, s53, 0\ns_and_b32 s17, s17, 0xffff")
        a(f"s_mul_i32 s69, s69, {8*768}\ns_lshl_b32 s25, s25, {9 if TB else 10}\ns_add_u32 s69, s69, s25\ns_add_u32 s69, s69, {QP}")
        a("v_lshrrev_b32 v164, 4, v1\nv_and_b32 v165, 15, v1")
        if TB:
            a(f"v_mul_u32_u24 v38, 1280, v164\nv_lshlrev_b32 v13, 4, v165\nv_lshl_add_u32 v37, v38, 2, v13\nv_add_u32 v38, v38, v13")
            a(f"v_lshl_add_u32 v14, v164, 7, s69\nv_add_u32 v14, v14, v11\ns_lshl_b32 s68, {sSW}, 4\nv_lshl_add_u32 v39, v164, 2, s68")
        else:
            a(f"v_mul_u32_u24 v38, 1280, v2\nv_lshl_add_u32 v37, v38, 2, v11\nv_add_u32 v38, v38, v11")
            a(f"v_lshl_add_u32 v14, v1, 4, s69\ns_lshl_b32 s68, {sSW}, 5\nv_lshl_add_u32 v39, v2, 2, s68")
        a(f"s_lshr_b32 s25, s26, 6\ns_and_b32 s26, {sSW}, {3 if TB else 1}\ns_add_u32 s25, s25, s26\ns_lshl_b32 s26, s25, {ast+2}\ns_add_u32 s26, s26, {ACC}")
        a(f"v_lshl_add_u32 v13, v164, {ast}, s26\nv_lshl_add_u32 v13, v165, 2, v13")
        a("v_and_b32 v165, 1, v164\nv_lshrrev_b32 v164, 1, v164\nv_lshl_add_u32 v164, v165, 1, v164\nv_lshl_add_u32 v164, v3, 2, v164\ns_lshl_b32 s26, s25, 6\nv_lshl_add_u32 v164, v164, 1, s26")
        a("global_load_ushort v40, v164, s[54:55]")
    hooks[ntail].append(tailsetup)
    def qcheck():
        a("; ---- q (bf16) from LDS")
        stamp(2)
        a("s_mov_b32 s68, 0\nL_qw:")
        a(f"ds_read_b96 v[52:54], v9 offset:{LFQ}")
        for j in range(3): a(f"ds_read_b128 v[{20+4*j}:{23+4*j}], v11 offset:{LQ+128*j}")
        a("s_waitcnt lgkmcnt(0)\nv_min3_f32 v52, v52, v53, v54\nv_cmp_gt_f32 vcc, 0, v52")
        spin_tail("L_qw","L_qr",1)
        cnt(0)
    if st3 is not None: hooks[st3].append(lambda: stamp(3))
    def modecheck():
        a("; ---- store mode, tag, 1-g and GELU coefficient from the control waves")
        a("s_mov_b32 s68, 0\nL_smw:")
        a(f"ds_read_b128 v[52:55], v9 offset:{LCD}\nds_read_b32 v56, v9 offset:{LFQ+12}\nds_read_b32 v43, v9 offset:{LG+4}\nds_read_b32 v41, v39 offset:{LHV}\nds_read_b32 v57, v9 offset:{LTG+4}")
        a("s_waitcnt lgkmcnt(0)\nv_min3_f32 v52, v52, v53, v54\nv_min_f32 v52, v52, v55\nv_cmp_gt_f32 vcc, 0, v52")
        spin_tail("L_smw","L_smok",1)
        a(f"v_readfirstlane_b32 {sMode}, v56\nv_readfirstlane_b32 s70, v57")
        tagbytes(True)
        for w in range(4): a(f"v_and_b32 v{160+w}, v41, v{16+w}")
        a("v_lshlrev_b32 v40, 16, v40\nv_mul_f32 v40, v43, v40")
    hooks[nm].append(modecheck)
    sc=f32hex(192**-0.5)
    def qk(t):
        def f():
            x,y=44+t,45+t
            a(f"; ---- scores of steps {t},{t+1}\nv_mov_b32 v{x}, 0\nv_mov_b32 v{y}, 0")
            for j in range(3):
                for w in range(4):
                    for tt in (t,t+1): a(f"v_dot2c_f32_bf16 v{44+tt}, v{K0+12*tt+4*j+w}, v{20+4*j+w}")
            red8("v_add_f32",[x,y])
            a(f"v_cvt_pk_bf16_f32 v52, v{x}, v{y}\nv_lshlrev_b32 v{x}, 16, v52\nv_and_b32 v{y}, 0xffff0000, v52\nv_mul_f32 v{x}, {sc}, v{x}\nv_mul_f32 v{y}, {sc}, v{y}")
            a(f"v_cvt_pk_bf16_f32 v52, v{x}, v{y}\nv_lshlrev_b32 v{x}, 16, v52\nv_and_b32 v{y}, 0xffff0000, v52")
        return f
    def afrag(t):
        a(f"v_cvt_pk_bf16_f32 v{44+t}, v{44+t}, v{44+t}")
        for w in range(4): a(f"v_and_b32 v{32+w}, v{44+t}, v{16+w}")
    def softmax():
        a("; ---- wave max, exp, wave sum")
        a("v_max3_f32 v52, v44, v45, v46\nv_max3_f32 v53, v47, v48, v49\nv_max3_f32 v52, v52, v50, v51\nv_max_f32 v52, v52, v53")
        a(f"v_max_f32_dpp v52, v52, v52 row_ror:8 {DPPM}")
        redrows("v_max_f32",52,53)
        a(f"s_mov_b32 s68, {f32hex(math.log2(math.e))}\nv_mul_f32 v52, s68, v52")
        for t in range(8): a(f"v_fma_f32 v{44+t}, v{44+t}, s68, -v52")
        for t in range(8): a(f"v_exp_f32 v{44+t}, v{44+t}")
        a("v_add_f32 v53, v44, v45\nv_add_f32 v54, v46, v47\nv_add_f32 v55, v48, v49\nv_add_f32 v56, v50, v51\nv_add_f32 v53, v53, v54\nv_add_f32 v55, v55, v56\nv_add_f32 v53, v53, v55")
        a(f"v_add_f32_dpp v53, v53, v53 row_ror:8 {DPPM}")
        redrows("v_add_f32",53,54)
        a(f"ds_write_b64 v8, v[52:53] offset:{LML}")
        afrag(0)
        stamp(4)
    def mf(t,j):
        C="0" if t==0 else f"v[{20+4*j}:{23+4*j}]"
        r=K0+12*t+4*j
        a(f"v_mfma_f32_16x16x32_bf16 v[{20+4*j}:{23+4*j}], v[32:35], v[{r}:{r+3}], {C}")
    def pv(t):
        def f():
            for j in range(3): mf(t,j)
            afrag(t+1)
        return f
    assert nset<ntail<nq
    hooks[nq].append(qcheck)
    pos=nq
    for t in (0,2,4,6):
        pos=max(pos, ready(3*(t+1)+2))
        assert pos < 24+3*t, (pos,t)
        hooks[pos].append(qk(t)); pos+=1
    hooks[pos].append(softmax); pos+=1
    assert nm>=pos
    pend=[]
    for t in range(7):
        k=24+3*t+2
        p=max(pos, ready(k))
        if p<N and not pend:
            hooks[p].append(pv(t)); pos=p
            if t==1: assert p<48
        else: pend.append((k,pv(t)))
    for j in range(3):
        k=45+j
        p=max(pos, ready(k))
        fn=(lambda j=j: mf(7,j))
        if p<N and not pend: hooks[p].append(fn); pos=p
        else: pend.append((k,fn))
    for n in range(N):
        w=waitn(n)
        if n<48:
            t,j=(n%24)//3,n%3
            srd=4 if n<24 else 8
            if j==0: a(f"s_mov_b32 s71, {t*196608}")
            if w is not None: a(f"s_waitcnt vmcnt({w})")
            r=K0+12*t+4*j
            a(f"buffer_load_dwordx4 v[{r}:{r+3}], v4, s[{srd}:{srd+3}], s71 offen offset:{128*j} nt")
        else:
            k=n-48
            if w is not None: a(f"s_waitcnt vmcnt({w})")
            if k==0: a(f"buffer_load_dwordx4 v[{WR}:{WR+3}], v38, s[16:19], 0 offen nt")
            else: a(f"buffer_load_dwordx4 v[{WR+4*k}:{WR+4*k+3}], v37, s[12:15], 0 offen offset:{1280*(k-1)} nt")
        if n==wbar: a("s_barrier")
        for h in hooks[n]: h()
    for k,fn in pend:
        a(f"s_waitcnt vmcnt({N-1-k})"); fn()
    stamp(6)
    a("s_mov_b64 exec, s[46:47]")
    for j in range(3): a(f"ds_write_b128 v5, v[{20+4*j}:{23+4*j}] offset:{LO+256*j}")
    a("s_mov_b64 exec, -1\ns_waitcnt lgkmcnt(0)\ns_barrier")
    a(f"ds_read_b128 v[60:63], v6 offset:{LO}\nds_read_b128 v[52:55], v6 offset:{LO+768}\nds_read_b32 v59, v7 offset:{LFF+4}")
    a(f"s_waitcnt lgkmcnt({0 if diag else 1})")
    for k in range(4): a(f"v_add_f32 v{60+k}, v{60+k}, v{52+k}")
    a("s_waitcnt lgkmcnt(0)")
    for k in range(4): a(f"v_mul_f32 v{60+k}, v59, v{60+k}")
    red8("v_add_f32",[60,61,62,63])
    tag4(60)
    a("s_mov_b64 exec, s[48:49]")
    lstore("buffer_store_dwordx4 v[60:63], v10, s[20:23], 0 offen")
    a("s_mov_b64 exec, -1")
    stamp(7)
    a(f"s_cmp_lt_u32 {sA}, 30\ns_cbranch_scc0 L_fin")
    RING=[88,92,96,100]
    ld=lambda r:a(f"buffer_load_dwordx4 v[{r}:{r+3}], v14, s[20:23], 0 offen {lp}")
    a("s_mov_b32 s68, 0")
    for i in range(h1d):
        a(f"s_sleep {h1s}"); ld(RING[i])
    a(f"s_waitcnt vmcnt({4+1+h1d})")
    a(f"v_mfma_f32_16x16x32_bf16 v[24:27], v[160:163], v[{WR}:{WR+3}], 0")
    for r in range(4): a(f"v_mul_f32 v{24+r}, v43, v{24+r}")
    a("L_h1_loop:")
    for i in range(h1d):
        r=RING[i]
        a(f"s_waitcnt vmcnt({h1d-1})")
        a(f"v_perm_b32 v52, v{r+1}, v{r}, s30\nv_perm_b32 v53, v{r+3}, v{r+2}, s31\nv_or_b32 v52, v52, v53\nv_cmp_ne_u32 vcc, {sTag}, v52")
        a(f"s_cbranch_vccz L_h1_ok{i}")
        ld(r)
    a(f"s_add_u32 s68, s68, 1\ns_cmp_gt_u32 s68, {SPIN}\ns_cbranch_scc0 L_h1_loop")
    for i in reversed(range(h1d)):
        a.fence()
        a(f"L_h1_ok{i}:")
        for k in range(4): a(f"v_add_f32_dpp v{56+k}, v{RING[i]+k}, v{RING[i]+k} {M8[0]} {DPPM}")
        if i: a("s_branch L_h1_done")
    a("L_h1_done:")
    stamp(8)
    cnt(2)
    red8("v_add_f32",[56,57,58,59],M8[1:])
    for t in range(4): a(f"v_cvt_pk_bf16_f32 v{56+t}, v{56+t}, v{56+t}")
    AF=[32,44,48,52]
    for t in range(4):
        for w in range(4): a(f"v_and_b32 v{AF[t]+w}, v{56+t}, v{16+w}")
        if t>0: a(f"v_mfma_f32_16x16x32_bf16 v[24:27], v[{AF[t-1]}:{AF[t-1]+3}], v[{WR+4*t}:{WR+4*t+3}], v[24:27]")
    a(f"v_mfma_f32_16x16x32_bf16 v[24:27], v[{AF[3]}:{AF[3]+3}], v[{WR+16}:{WR+19}], v[24:27]")
    a(f"v_mov_b32 v58, 1.0\nv_mov_b32 v59, {f32hex(47.0 if TB else 23.0)}\ns_cmp_lt_u32 {sSW}, {4 if TB else 2}")
    a("s_mov_b32 exec_hi, 0" if TB else "s_mov_b64 exec, s[46:47]")
    a(f"ds_write_b128 v12, v[24:27] offset:{LZ}")
    a(f"s_mov_b64 exec, -1\ns_waitcnt lgkmcnt(0)\ns_barrier\ns_cbranch_scc0 L_fin")
    if TB: a(f"ds_read_b128 v[60:63], v36 offset:{LZ}\ns_waitcnt lgkmcnt(0)\ns_nop 1")
    else:
        a(f"ds_read_b128 v[60:63], v36 offset:{LZ}\nds_read_b128 v[52:55], v36 offset:{LZ+256}\ns_waitcnt lgkmcnt(0)")
        for k in range(4): a(f"v_add_f32 v{60+k}, v{60+k}, v{52+k}")
    a("v_permlane32_swap_b32 v60, v61\nv_permlane32_swap_b32 v62, v63\nv_add_f32 v60, v60, v61\nv_add_f32 v62, v62, v63")
    a("v_permlane16_swap_b32 v60, v62\nv_add_f32 v60, v60, v62")
    a("v_add_f32_dpp v58, v60, v60 row_ror:8 row_mask:0xf bank_mask:0x3")
    a("buffer_atomic_add_f32 v58, v13, s[20:23], 0 offen sc0 sc1")
    stamp(9)
    a(f"v_add_f32_dpp v61, v60, v60 row_ror:8 {DPPM}\nv_add_f32 v61, v61, v40")
    a("s_waitcnt vmcnt(0)")
    a(f"v_cmp_eq_f32 vcc, v59, v58\nv_add_f32 v61, v61, v58\nv_cvt_pk_bf16_f32 v61, v61, v61\ns_lshr_b64 vcc, vcc, 8")
    a("s_and_b64 exec, vcc, s[32:33]\ns_cbranch_execz L_fin")
    a(f"global_store_short v164, v61, s[58:59]")
    stamp(5)
    a("s_branch L_fin" if diag else "s_endpgm")
    a.fence()
    a("L_ctl:")
    if cprio: a(f"s_setprio {cprio}")
    ids()
    a(f"s_cmp_eq_u32 {sW}, 3\ns_cbranch_scc1 L_gate")
    S1=64
    a(f"s_mul_i32 s68, {sS}, {80*12288}\ns_mul_i32 s69, {sH}, 384\ns_add_u32 s68, s68, s69\ns_lshl_b32 s69, {sW}, 7\ns_add_u32 s68, s68, s69")
    a(f"s_mul_i32 s71, {sA}, {20*3072}\ns_add_u32 s71, s71, s69\ns_mul_i32 s69, {sG}, 384\ns_add_u32 s71, s71, s69")
    a(f"s_mov_b32 s14, {79*12288+128}\ns_mov_b32 s15, 0x20000\ns_mov_b32 s18, {19*3072+128}\ns_mov_b32 s19, 0x20000\ns_mov_b32 s34, 1280\ns_mov_b32 s35, 0x20000")
    a(f"v_mul_u32_u24 v5, {10*12288}, v2\nv_lshl_add_u32 v5, v3, 4, v5")
    a(f"v_mul_u32_u24 v6, {3*3072}, v2\nv_lshl_add_u32 v6, v3, 4, v6\nv_add_u32 v14, 6144, v6")
    a(f"v_mul_u32_u24 v7, 20, v2\ns_mul_i32 s27, {sS}, 160\nv_add_u32 v7, s27, v7")
    a(f"v_mul_u32_u24 v8, 6, v2\ns_mul_i32 s27, {sA}, 40\nv_add_u32 v8, s27, v8")
    a("s_waitcnt lgkmcnt(0)")
    a(f"s_add_u32 s12, s42, s68\ns_addc_u32 s13, s43, 0\ns_and_b32 s13, s13, 0xffff")
    a(f"s_add_u32 s16, s48, s71\ns_addc_u32 s17, s49, 0\ns_and_b32 s17, s17, 0xffff")
    a(f"s_mov_b32 s32, s36\ns_and_b32 s33, s37, 0xffff")
    def xl():
        a(f"buffer_load_dwordx4 v[{S1+52}:{S1+55}], v7, s[32:35], 0 offen")
        a(f"buffer_load_dword v{S1+56}, v7, s[32:35], 0 offen offset:16")
        for t in range(3): a(f"buffer_load_ushort v{S1+60+t}, v8, s[32:35], 0 offen offset:{2*t}")
    def cw(t):
        if cD and t>=cD: a(f"s_waitcnt vmcnt({cD-1})")
    for t in range(10):
        cw(t)
        a(f"s_mov_b32 s71, {t*12288}\nbuffer_load_dwordx4 v[{S1+4*t}:{S1+4*t+3}], v5, s[12:15], s71 offen nt")
    cw(10); a(f"buffer_load_dwordx4 v[{S1+40}:{S1+43}], v6, s[16:19], 0 offen nt")
    cw(11); a(f"buffer_load_dwordx4 v[{S1+44}:{S1+47}], v6, s[16:19], 0 offen offset:3072 nt")
    cw(12); a(f"buffer_load_dwordx4 v[{S1+48}:{S1+51}], v14, s[16:19], 0 offen nt")
    xl()
    wssrd(); masks()
    a(f"s_lshl_b32 s68, {sH}, 3\ns_add_u32 s68, s68, {sS}\ns_mul_i32 s68, s68, 768\ns_add_u32 s68, s68, {QP}")
    a(f"s_mul_i32 s69, {sG}, {32*768}\ns_lshl_b32 s27, {sA}, 4\ns_add_u32 s69, s69, s27\ns_add_u32 s69, s69, {HP}")
    a(f"v_and_b32 v10, 16, v1\nv_lshl_add_u32 v10, v3, 5, v10\ns_lshl_b32 s27, {sW}, 8\nv_add_u32 v10, s27, v10")
    a(f"v_add_u32 v9, s68, v10\nv_lshl_add_u32 v10, v10, 5, s69\nv_cmp_gt_u32 vcc, 32, v1\nv_cndmask_b32 v9, v10, v9, vcc")
    a(f"v_lshrrev_b32 v10, 4, v1\nv_mul_u32_u24 v11, 768, v10\nv_and_b32 v12, 15, v1\nv_lshl_add_u32 v11, v12, 4, v11")
    a(f"s_mul_i32 s69, {sH}, {8*768}\ns_add_u32 s69, s69, s27\ns_add_u32 s69, s69, {QP}\nv_add_u32 v11, s69, v11")
    a(f"v_and_b32 v13, 1, v10\nv_lshlrev_b32 v13, 1, v13\nv_lshrrev_b32 v14, 1, v10\nv_add_u32 v13, v13, v14\nv_lshl_add_u32 v13, v12, 2, v13\nv_lshlrev_b32 v13, 1, v13\ns_lshl_b32 s69, {sW}, 7\nv_add_u32 v13, s69, v13")
    a(f"v_mov_b32 v6, 0\ns_mov_b32 s68, 0\nL_tgw:\nds_read_b64 v[52:53], v6 offset:{LTG}\ns_waitcnt lgkmcnt(0)\nv_cmp_gt_f32 vcc, 0, v52")
    spin_tail("L_tgw","L_tgok",1)
    a("v_readfirstlane_b32 s70, v53"); tagbytes()
    a("s_mov_b32 s68, 0x01000100\ns_mov_b32 s69, 0x03020302")
    a(f"s_waitcnt vmcnt(0)")
    for t in range(13):
        A=52+4*(t&1)
        if t<10: a(f"v_perm_b32 v60, v{S1+52+t//2}, v{S1+52+t//2}, s{68+(t&1)}")
        else: a(f"v_perm_b32 v60, v{S1+60+t-10}, v{S1+60+t-10}, s68")
        for w in range(4): a(f"v_and_b32 v{A+w}, v60, v{16+w}")
        Dr=32 if t<10 else 36
        C="0" if t in (0,10) else f"v[{Dr}:{Dr+3}]"
        a(f"v_mfma_f32_16x16x32_bf16 v[{Dr}:{Dr+3}], v[{A}:{A+3}], v[{S1+4*t}:{S1+4*t+3}], {C}")
    for r in range(4): a(f"v_permlane32_swap_b32 v{32+r}, v{36+r}")
    for r in range(4): a(f"v_add_f32_dpp v{32+r}, v{36+r}, v{32+r} row_ror:8 {DPPM}")
    tag4(32)
    a("s_mov_b32 exec_lo, 0x00ff00ff\ns_mov_b32 exec_hi, 0x00ff00ff")
    a("buffer_store_dwordx4 v[32:35], v9, s[20:23], 0 offen")
    a("s_mov_b64 exec, -1")
    stamp(2)
    def restore(tagn):
        a(f"v_readfirstlane_b32 {sMode}, v63\ns_cmp_eq_u32 {sMode}, 1.0\ns_cbranch_scc0 L_nr{tagn}\ns_cmp_eq_u32 s26, 0\ns_cbranch_scc0 L_nr{tagn}")
        a("s_mov_b32 s26, 1\ns_mov_b32 exec_lo, 0x00ff00ff\ns_mov_b32 exec_hi, 0x00ff00ff\nbuffer_store_dwordx4 v[32:35], v9, s[20:23], 0 offen sc1\ns_mov_b64 exec, -1")
        a(f"L_nr{tagn}:")
    a(f"s_mov_b32 s26, 0\ns_mov_b32 s68, 0\ns_sleep 8")
    a("L_qpoll:")
    a(f"buffer_load_dwordx4 v[52:55], v11, s[20:23], 0 offen {lp}")
    a(f"buffer_load_dwordx4 v[56:59], v11, s[20:23], 0 offen offset:3072 {lp}")
    a(f"s_waitcnt vmcnt(0)\nds_read_b32 v63, v6 offset:{LFQ+12}")
    chk4(52,60,True,62); chk4(56,60,False,62)
    a("s_waitcnt lgkmcnt(0)")
    restore(1)
    a("v_cmp_ne_u32 vcc, 0, v62")
    spin_tail("L_qpoll","L_qok")
    cnt(0)
    for r in range(4): a(f"v_add_f32 v{52+r}, v{52+r}, v{56+r}")
    a("v_permlane32_swap_b32 v52, v53\nv_permlane32_swap_b32 v54, v55\nv_add_f32 v52, v52, v53\nv_add_f32 v54, v54, v55")
    a("v_permlane16_swap_b32 v52, v54\nv_add_f32 v52, v52, v54\nv_cvt_pk_bf16_f32 v52, v52, v52")
    a(f"ds_write_b16 v13, v52 offset:{LQ}")
    a(f"s_lshl_b32 s68, {sW}, 2\nv_mov_b32 v5, s68\nds_write_b32 v5, v6 offset:{LFQ}")
    stamp(3)
    a("s_mov_b32 s68, 0\nL_mw:")
    a(f"ds_read_b32 v63, v6 offset:{LFQ+12}\ns_waitcnt lgkmcnt(0)\nv_cmp_gt_f32 vcc, 0, v63")
    spin_tail("L_mw","L_mok",1)
    restore(2)
    a("s_branch L_ffn")
    a.fence()
    a("L_gate:")
    G=64
    if init=="first": accinit()
    a("s_getreg_b32 s25, hwreg(HW_REG_XCC_ID)\ns_and_b32 s25, s25, 15")
    a("s_waitcnt lgkmcnt(0)")
    a(f"s_lshl_b32 s71, {sG}, 7\ns_load_dword s70, s[62:63], s71")
    wssrd()
    a("v_mul_u32_u24 v7, 20, v1")
    a(f"s_lshl_b32 s27, {sG}, 7\ns_add_u32 s27, s27, {XT}\nv_and_b32 v11, 31, v1\nv_lshl_add_u32 v8, v11, 2, s27\ns_lshl_b32 s26, {sA}, 2\ns_add_u32 s26, s26, s27\nv_mov_b32 v4, s26")
    a("s_waitcnt lgkmcnt(0)")
    a(f"s_and_b32 s72, s70, 0x7f7f7f7f\ns_add_u32 s72, s72, 0x01010101\ns_and_b32 s73, s70, 0x80808080\ns_xor_b32 s70, s72, s73")
    tagbytes()
    a(f"v_mov_b32 v54, 0\nv_mov_b32 v55, s70\nds_write_b64 v54, v[54:55] offset:{LTG}")
    a(f"s_and_b32 s27, {sTag}, 0xfffffff0\ns_or_b32 s27, s27, s25\nv_mov_b32 v52, s27")
    a(f"s_mov_b64 exec, 1\nbuffer_store_dword v52, v4, s[20:23], 0 offen{'' if xplain else ' sc1'}\ns_mov_b64 exec, -1")
    if init=="c3": accinit()
    a(f"global_load_dwordx4 v[{G}:{G+3}], v7, s[36:37]\nglobal_load_dword v{G+4}, v7, s[36:37] offset:16")
    a(f"global_load_dwordx4 v[{G+8}:{G+11}], v7, s[56:57]\nglobal_load_dword v{G+12}, v7, s[56:57] offset:16")
    a("v_mov_b32 v6, 0\ns_waitcnt vmcnt(0)\nv_mov_b32 v52, 0")
    for k in range(5):
        a(f"v_lshlrev_b32 v53, 16, v{G+k}\nv_and_b32 v54, 0xffff0000, v{G+k}\nv_lshlrev_b32 v55, 16, v{G+8+k}\nv_and_b32 v56, 0xffff0000, v{G+8+k}")
        a("v_mul_f32 v53, v53, v55\nv_mul_f32 v54, v54, v56\nv_cvt_pk_bf16_f32 v53, v53, v54\nv_lshlrev_b32 v54, 16, v53\nv_and_b32 v53, 0xffff0000, v53\nv_add_f32 v52, v52, v54\nv_add_f32 v52, v52, v53")
    red16("v_add_f32",[52]); redrows("v_add_f32",52,53)
    a("v_cvt_pk_bf16_f32 v52, v52, v52\nv_and_b32 v52, 0xffff0000, v52")
    a(f"v_mul_f32 v52, {f32hex(-math.log2(math.e))}, v52\nv_exp_f32 v52, v52\nv_add_f32 v52, 1.0, v52\nv_rcp_f32 v52, v52")
    a("v_cvt_pk_bf16_f32 v52, v52, v52\nv_and_b32 v46, 0xffff0000, v52\nv_sub_f32 v47, 1.0, v46\nv_cvt_pk_bf16_f32 v47, v47, v47\nv_and_b32 v47, 0xffff0000, v47")
    a(f"ds_write_b64 v6, v[46:47] offset:{LG}")
    a("s_mov_b32 s68, 0\nL_gq0:")
    a(f"ds_read_b96 v[52:54], v6 offset:{LFQ}\ns_waitcnt lgkmcnt(0)\nv_min3_f32 v52, v52, v53, v54\nv_cmp_gt_f32 vcc, 0, v52")
    spin_tail("L_gq0","L_gq0ok",2,hsb)
    if xplain:
        a("; the announcement was a plain store: seeing all 32 with this XCD's id proves the group shares this L2")
        a(f"s_mov_b32 s68, 0\ns_mov_b32 {sMode}, 0\nL_xp1:")
        a(f"buffer_load_dword v53, v8, s[20:23], 0 offen {lp}\ns_waitcnt vmcnt(0)\nv_cmp_ne_u32 vcc, s27, v53")
        if forcesafe: a("s_mov_b64 vcc, -1")
        a(f"s_cbranch_vccz L_xp1ok\ns_sleep 16\ns_add_u32 s68, s68, 1\ns_cmp_lt_u32 s68, {xtry}\ns_cbranch_scc1 L_xp1")
        a(f"; no proof: write-through hand-offs from here on, and repeat the announcement write-through\ns_mov_b32 {sMode}, 1.0")
        a("v_mov_b32 v52, s27\ns_mov_b64 exec, 1\nbuffer_store_dword v52, v4, s[20:23], 0 offen sc1\ns_mov_b64 exec, -1")
        a("L_xp1ok:")
        a(f"v_mov_b32 v55, {sMode}\nds_write_b32 v6, v55 offset:{LFQ+12}")
        a("s_mov_b32 s68, 0\ns_branch L_xp2\nL_xpoll:")
        a(f"buffer_load_dword v53, v8, s[20:23], 0 offen {lp}\nL_xp2:\nglobal_load_dword v54, v6, s[60:61] sc1\ns_waitcnt vmcnt(0)")
        a("v_xor_b32 v55, s27, v53\nv_cmp_eq_u32 s[4:5], 0, v54\nv_cmp_lt_u32 vcc, 15, v55\ns_or_b64 vcc, vcc, s[4:5]")
        spin_tail("L_xpoll","L_xok",16)
    else:
        a("s_mov_b32 s68, 0\nL_xpoll:")
        a("buffer_load_dword v53, v8, s[20:23], 0 offen sc1\nglobal_load_dword v54, v6, s[60:61] sc1\ns_waitcnt vmcnt(0)")
        a("v_xor_b32 v53, s27, v53\nv_cmp_eq_u32 s[4:5], 0, v54\nv_cmp_lt_u32 vcc, 15, v53\ns_or_b64 vcc, vcc, s[4:5]")
        spin_tail("L_xpoll","L_xok",16)
        a("v_cmp_ne_u32 vcc, 0, v53")
        if forcesafe: a(f"s_mov_b32 {sMode}, 1.0")
        else: a(f"s_cmp_lg_u64 vcc, 0\ns_cselect_b32 {sMode}, 1.0, 0")
        a(f"v_mov_b32 v53, {sMode}\nds_write_b32 v6, v53 offset:{LFQ+12}")
    a(f"; all 32 workgroups of the group have read the epoch: advance it\ns_cmp_eq_u32 {sA}, 0\ns_cbranch_scc0 L_noep\ns_lshl_b32 s71, {sG}, 7\nv_mov_b32 v54, s70\ns_mov_b64 exec, 1\nbuffer_store_dword v54, v6, s[20:23], s71 offen{'' if eplain else ' sc1'}\ns_mov_b64 exec, -1\nL_noep:")
    stamp(2)
    cnt(0)
    a("L_ffn:")
    a.fence()
    nl = 1 if TB else 2
    a(f"s_lshl_b32 s68, {sRG}, 2\ns_add_u32 s68, s68, {sW}")
    a(f"s_lshl_b32 s69, s68, {10 if TB else 11}\ns_mul_i32 s27, {sG}, {32*768}\ns_add_u32 s69, s69, s27\ns_add_u32 s69, s69, {HP}")
    a("v_lshl_add_u32 v11, v1, 4, s69")
    a(f"s_lshl_b32 s69, s68, {4 if TB else 5}\ns_mul_i32 s27, {sG}, 384\ns_add_u32 s69, s69, s27\nv_lshrrev_b32 v10, 4, v1\nv_lshl_add_u32 v12, v10, 2, s69")
    a("global_load_dword v44, v12, s[50:51]")
    if nl==2: a("global_load_dword v45, v12, s[50:51] offset:16")
    a(f"s_lshl_b32 s69, {sW}, {5 if TB else 6}\nv_lshl_add_u32 v13, v10, 3, s69")
    a(f"s_mov_b32 s68, 0\nL_hpoll:")
    a(f"buffer_load_dwordx4 v[52:55], v11, s[20:23], 0 offen {lp}")
    if nl==2: a(f"buffer_load_dwordx4 v[56:59], v11, s[20:23], 0 offen offset:1024 {lp}")
    a("s_waitcnt vmcnt(0)")
    chk4(52,60,True,62)
    if nl==2: chk4(56,60,False,62)
    a("v_cmp_ne_u32 vcc, 0, v62")
    spin_tail("L_hpoll","L_hok",8)
    cnt(1)
    BL=((52,44,0),(56,45,32))[:nl]
    for b,_,_ in BL:
        a(f"v_permlane16_swap_b32 v{b}, v{b+2}\nv_permlane16_swap_b32 v{b+1}, v{b+3}\nv_add_f32 v{b}, v{b}, v{b+2}\nv_add_f32 v{b+1}, v{b+1}, v{b+3}")
    red16("v_add_f32",[x for b,_,_ in BL for x in (b,b+1)])
    c1=-2*math.sqrt(2/math.pi)*math.log2(math.e)
    for b,bb,o in BL:
        a(f"v_cvt_pk_bf16_f32 v60, v{b}, v{b+1}\nv_lshlrev_b32 v{b}, 16, v60\nv_and_b32 v{b+1}, 0xffff0000, v60")
        a(f"v_lshlrev_b32 v60, 16, v{bb}\nv_and_b32 v61, 0xffff0000, v{bb}\nv_add_f32 v{b}, v{b}, v60\nv_add_f32 v{b+1}, v{b+1}, v61")
        a(f"v_cvt_pk_bf16_f32 v60, v{b}, v{b+1}\nv_lshlrev_b32 v{b}, 16, v60\nv_and_b32 v{b+1}, 0xffff0000, v60")
        for x,t in ((b,60),(b+1,61)):
            a(f"v_mul_f32 v{t}, v{x}, v{x}\nv_mul_f32 v{t}, {f32hex(0.044715)}, v{t}\nv_fma_f32 v{t}, v{t}, v{x}, v{x}\nv_mul_f32 v{t}, {f32hex(c1)}, v{t}")
            a(f"v_exp_f32 v{t}, v{t}\nv_add_f32 v{t}, 1.0, v{t}\nv_rcp_f32 v{t}, v{t}\nv_mul_f32 v{x}, v{x}, v{t}\nv_cvt_pk_bf16_f32 v{x}, v{x}, v{x}")
        a(f"ds_write_b64 v13, v[{b}:{b+1}] offset:{LHV+o}")
    a(f"s_lshl_b32 s68, {sW}, 2\nv_mov_b32 v5, s68\nds_write_b32 v5, v6 offset:{LCD}")
    stamp(4)
    a(f"s_waitcnt lgkmcnt(0)\ns_cmp_eq_u32 {sW}, 3\ns_cbranch_scc0 L_fin")
    a(f"s_lshl_b32 s68, {sH}, 3\ns_add_u32 s68, s68, {sS}\ns_lshl_b32 s68, s68, 4\ns_add_u32 s68, s68, {ML}\nv_mov_b32 v5, s68")
    a(f"s_lshl_b32 s68, {sH}, 7\ns_add_u32 s68, s68, {ML}\nv_lshl_add_u32 v8, v3, 4, s68\nv_lshlrev_b32 v7, 3, v3")
    a(f"s_mov_b32 s68, 0\nL_lml:")
    a(f"ds_read_b128 v[48:51], v6 offset:{LCD}\nds_read_b64 v[54:55], v7 offset:{LML}\ns_waitcnt lgkmcnt(0)\nv_min3_f32 v48, v48, v49, v50\nv_min_f32 v48, v48, v55\nv_cmp_gt_f32 vcc, 0, v48")
    spin_tail("L_lml","L_lmlok",2)
    a("v_mov_b32 v56, v54")
    red8("v_max_f32",[56])
    a("v_sub_f32 v57, v54, v56\nv_exp_f32 v57, v57\nv_mul_f32 v57, v57, v55")
    red8("v_add_f32",[57])
    a(f"v_mov_b32 v59, {sTag}\ns_mov_b64 exec, 1")
    lstore("buffer_store_dwordx4 v[56:59], v5, s[20:23], 0 offen")
    stamp(5)
    a("s_mov_b32 s68, 0\ns_waitcnt vmcnt(0)\ns_mov_b64 exec, 0xff")
    a("L_mlpoll:")
    a(f"buffer_load_dwordx4 v[56:59], v8, s[20:23], 0 offen {lp}\ns_waitcnt vmcnt(0)\nv_cmp_ne_u32 vcc, {sTag}, v59")
    spin_tail("L_mlpoll","L_mlok")
    cnt(2)
    a("v_mov_b32 v58, v56")
    red8("v_max_f32",[58])
    a("v_sub_f32 v56, v56, v58\nv_exp_f32 v56, v56\nv_mul_f32 v57, v56, v57")
    red8("v_add_f32",[57])
    a("v_rcp_f32 v57, v57\nv_sub_f32 v54, v54, v58\nv_exp_f32 v54, v54\nv_mul_f32 v54, v54, v57\nv_mul_f32 v54, v54, v46")
    a(f"ds_write_b32 v7, v54 offset:{LFF+4}\ns_waitcnt lgkmcnt(0)")
    stamp(6)
    a("L_fin:")
    if diag:
        a("s_mov_b64 exec, -1\ns_waitcnt vmcnt(0)")
        stamp(1)
        a("s_getreg_b32 s99, hwreg(HW_REG_XCC_ID)\ns_waitcnt lgkmcnt(0)")
        a(f"s_cmp_lt_u32 {sW}, 4\ns_cbranch_scc1 L_dgo")
        a("L_dw:\ns_sleep 32\ns_memrealtime s[4:5]\ns_waitcnt lgkmcnt(0)\ns_sub_u32 s4, s4, s76\ns_cmp_lt_u32 s4, 3000\ns_cbranch_scc1 L_dw\nL_dgo:")
        a(f"s_add_u32 s62, s62, {1610612736-(16<<20)}\ns_addc_u32 s63, s63, 0")
        a(f"s_mul_i32 s68, s2, 12\ns_add_u32 s68, s68, {sW}\ns_mul_i32 s68, s68, 96\nv_mov_b32 v4, s68")
        for i in range(24): a(f"v_mov_b32 v{64+i}, s{76+i}")
        a("s_mov_b64 exec, 1")
        for i in range(6): a(f"global_store_dwordx4 v4, v[{64+4*i}:{67+4*i}], s[62:63] offset:{16*i}")
    a("L_end:\ns_endpgm")
    for x in ool:
        a.fence(); a(x)
    a.raw(f""".section .rodata,"a"
.p2align 6
.amdhsa_kernel {NAME}
  .amdhsa_next_free_vgpr 168
  .amdhsa_next_free_sgpr 102
  .amdhsa_accum_offset 168
  .amdhsa_group_segment_fixed_size 0
  .amdhsa_kernarg_size 112
  .amdhsa_user_sgpr_count 2
  .amdhsa_user_sgpr_kernarg_segment_ptr 1
  .amdhsa_system_sgpr_workgroup_id_x 1
.end_amdhsa_kernel""")
    return a.text()
```

```python
import gen6, sys
from build import build
m=dict(tile="B",eplain=True,Dend=11,nend=45,D0=4)
t=gen6.gen(**m)
def probe(name, anchor, mult=1, nth=0, after=True, wg=100, wave=4):
    s=t.replace("    s_load_dwordx16 s[36:51]","    s_memrealtime s[76:77]\n    s_load_dwordx16 s[36:51]",1)
    idx=-1
    for _ in range(nth+1): idx=s.index(anchor,idx+1)
    pos=idx+len(anchor) if after else idx
    s=s[:pos]+"    s_memrealtime s[80:81]\n"+s[pos:]
    s=s.replace("lgkmcnt(1)","lgkmcnt(0)")
    s=s.replace("    global_store_short v164, v61, s[58:59]\n    s_endpgm","    global_store_short v164, v61, s[58:59]\n    s_branch L_fin")
    s=s.replace("L_fin:\n",f"L_fin:\n    s_cmp_eq_u32 s2, {wg}\n    s_cbranch_scc0 L_end\n    s_cmp_eq_u32 s3, {wave}\n    s_cbranch_scc0 L_end\n    s_waitcnt lgkmcnt(0)\n    s_sub_u32 s80, s80, s76\n    s_mul_i32 s80, s80, {mult}\n    s_add_u32 s80, s80, 3000\nL_pad:\n    s_memrealtime s[78:79]\n    s_waitcnt lgkmcnt(0)\n    s_sub_u32 s78, s78, s76\n    s_cmp_lt_u32 s78, s80\n    s_cbranch_scc1 L_pad\n")
    open(name+".s","w").write(s); build(name+".s")
probe("p1","offen offset:0 nt\n",mult=8)
probe("p2","    s_waitcnt vmcnt(2)\n",mult=4)
probe("p3","    ; ---- per-wave constants\n",mult=2)
probe("p4","L_qr:\n")
probe("p5","    ; ---- combine the 8 waves",after=False)
probe("p6","    buffer_atomic_add_f32",after=False)
```
